```python
import torch

def _softmax(x, axis=-1):
    return torch.softmax(x, dim=axis)
def _gelu(x):
    return torch.nn.functional.gelu(x, approximate="tanh")
def _silu(x):
    return torch.nn.functional.silu(x)
def _sigmoid(x):
    return torch.sigmoid(x)
def _layernorm(x, axis=-1, eps=1e-5):
    m = x.mean(dim=axis, keepdim=True)
    v = x.var(dim=axis, keepdim=True, unbiased=False)
    return (x - m) / torch.sqrt(v + eps)
def _scatter_add(tgt, idx, src, axis=0):
    return tgt.clone().index_add_(axis, idx, src)
def _segment_sum(src, seg, n):
    out = torch.zeros((n,) + src.shape[1:], dtype=src.dtype)
    return out.index_add_(0, seg, src)
def _pad(x, pw):
    flat = tuple(v for pair in reversed(pw) for v in pair)
    return torch.nn.functional.pad(x, flat)

kernel_name = 'standalone__qk_norm__prompt'

def setup_inputs():

    _w = (lambda a: (lambda t: t.to(torch.bfloat16) if t.is_floating_point() else t)(torch.as_tensor(a)))
    B, H, S, D = 2, 32, 2048, 640
    Dh = D // H
    return {
        "q": _w((lambda *s: torch.randn(*s, dtype=torch.bfloat16) * 0.05)(B, H, S, Dh)),
        "k": _w((lambda *s: torch.randn(*s, dtype=torch.bfloat16) * 0.05)(B, H, S, Dh)),
        "v": _w((lambda *s: torch.randn(*s, dtype=torch.bfloat16) * 0.8)(B, H, S, Dh)),
        "t": _w(torch.abs((lambda *s: torch.randn(*s, dtype=torch.bfloat16) * 0.8)(H)) + 1.0),
    }

def reference(q, k, v, t):
    eps = 1e-6
    qn = q / (torch.sqrt((q * q).sum(axis=-1, keepdims=True)) + eps)
    kn = k / (torch.sqrt((k * k).sum(axis=-1, keepdims=True)) + eps)
    logits = torch.einsum('bhqd,bhkd->bhqk', qn, kn) * t[None, :, None, None]
    attn = _softmax(logits, axis=-1)
    return torch.einsum('bhqk,bhkd->bhqd', attn, v)
```

```python
import sys

class Asm:
    def __init__(self):
        self.l = []
    def __call__(self, s):
        for x in s.strip("\n").split("\n"):
            x = x.strip()
            if x:
                self.l.append("  " + x)
    def label(self, s):
        self.l.append(s + ":")
    def c(self, s):
        self.l.append("  ; " + s)
    def text(self):
        return "\n".join(self.l) + "\n"

def vr(a, n=1):
    return f"v{a}" if n == 1 else f"v[{a}:{a+n-1}]"

CH = 256
NCH = 2048 // CH
KA0, KA1, KB0, KB1, VOFF = 0, 4096, 8192, 10240, 12288
BUF = 24576
NBUF = 3
LDS = BUF * NBUF
HEADB = 2048 * 40
V_TID, V_LANE = 0, 1
V_KADDR, V_KBADDR, V_VADDR = 2, 3, 4
V_KL, V_KBL, V_VL = 5, 6, 7
V_GOFF, V_WL, V_WL2, V_WA, V_WA2 = 8, 9, 10, 11, 12
T0, T1, T2, T3 = 14, 15, 16, 17
V_BIAS = 13
SA, SB, OA, OB = 20, 36, 52, 68
PA, PB = 84, 92
QAm, QAt, QBm, QBt = 100, 104, 106, 110
KF = [(112, 116), (118, 122)]
VF = [124, 132]
ST = 140
SU = 150
NV = 172

S_WAVE, S_ROLE, S_BH, S_QB = 32, 33, 30, 31
S_RB, S_WB, S_RN = 40, 41, 42
S_GOFF = 43
S_CNT = 44
S_T = 34
SRD_K, SRD_V, SRD_Q, SRD_O, SRD_S = 8, 12, 4, 16, 36

LOG2E = 0x3fb8aa3b

def emit_stage_compute_K(a):
    a(f"v_dot2_f32_bf16 {vr(T0)}, {vr(ST)}, {vr(ST)}, 0")
    a(f"v_dot2_f32_bf16 {vr(T1)}, {vr(ST+1)}, {vr(ST+1)}, 0")
    for i in range(2, 10, 2):
        a(f"v_dot2_f32_bf16 {vr(T0)}, {vr(ST+i)}, {vr(ST+i)}, {vr(T0)}")
        a(f"v_dot2_f32_bf16 {vr(T1)}, {vr(ST+i+1)}, {vr(ST+i+1)}, {vr(T1)}")
    for i in range(10):
        a(f"v_lshlrev_b32 {vr(SU+2*i)}, 16, {vr(ST+i)}")
        a(f"v_and_b32 {vr(SU+2*i+1)}, 0xffff0000, {vr(ST+i)}")
    a(f"v_add_f32 {vr(T0)}, {vr(T0)}, {vr(T1)}")
    a(f"v_sqrt_f32 {vr(T0)}, {vr(T0)}")
    a("s_nop 0")
    a(f"v_add_f32 {vr(T0)}, 0x358637bd, {vr(T0)}")
    a(f"v_rcp_f32 {vr(T2)}, {vr(T0)}")
    a("s_nop 0")
    for i in range(10):
        a(f"v_pk_mul_f32 {vr(SU+2*i,2)}, {vr(SU+2*i,2)}, {vr(T2,2)} op_sel_hi:[1,0]")
    for i in range(10):
        a(f"v_cvt_pk_bf16_f32 {vr(ST+i)}, {vr(SU+2*i)}, {vr(SU+2*i+1)}")
    a(f"ds_write_b128 {vr(V_WA)}, {vr(ST,4)} offset:{KA0}")
    a(f"ds_write_b128 {vr(V_WA)}, {vr(ST+4,4)} offset:{KA1}")
    a(f"ds_write_b64 {vr(V_WA2)}, {vr(ST+8,2)} offset:{KB0}")

def emit_stage_compute_V(a):
    a(f"ds_write_b128 {vr(V_WA)}, {vr(ST,4)} offset:{VOFF}")
    a(f"ds_write_b128 {vr(V_WA)}, {vr(ST+4,4)} offset:{VOFF+16}")
    a(f"ds_write_b64 {vr(V_WA)}, {vr(ST+8,2)} offset:{VOFF+32}")

def emit_stage_loads(a):
    a(f"buffer_load_dwordx4 {vr(ST,4)}, {vr(V_GOFF)}, s[{SRD_S}:{SRD_S+3}], s{S_GOFF} offen")
    a(f"buffer_load_dwordx4 {vr(ST+4,4)}, {vr(V_GOFF)}, s[{SRD_S}:{SRD_S+3}], s{S_GOFF} offen offset:16")
    a(f"buffer_load_dwordx2 {vr(ST+8,2)}, {vr(V_GOFF)}, s[{SRD_S}:{SRD_S+3}], s{S_GOFF} offen offset:32")

uid = [0]
def emit_stage_write(a):
    uid[0] += 1
    u = uid[0]
    a(f"v_add_u32 {vr(V_WA)}, s{S_WB}, {vr(V_WL)}")
    a(f"v_add_u32 {vr(V_WA2)}, s{S_WB}, {vr(V_WL2)}")
    a("s_waitcnt vmcnt(0)")
    a(f"s_cmp_lg_u32 s{S_ROLE}, 0")
    a(f"s_cbranch_scc1 L_stV{u}")
    emit_stage_compute_K(a)
    a(f"s_branch L_stE{u}")
    a.label(f"L_stV{u}")
    emit_stage_compute_V(a)
    a.label(f"L_stE{u}")

def k_reads(a, buf, tile):
    m, t = KF[buf]
    a(f"ds_read_b128 {vr(m,4)}, {vr(V_KADDR)} offset:{tile*512}")
    a(f"ds_read_b64 {vr(t,2)}, {vr(V_KBADDR)} offset:{tile*256}")

def v_reads(a, buf, tile):
    for j in range(2):
        for half in range(2):
            off = (tile*32 + 16*j + 4*half) * 48
            a(f"ds_read_b64_tr_b16 {vr(VF[buf] + 4*j + 2*half, 2)}, {vr(V_VADDR)} offset:{off}")

def qk(S, kbuf, Qm, Qt):
    m, t = KF[kbuf]
    return [f"v_mfma_f32_32x32x8_bf16 {vr(S,16)}, {vr(t,2)}, {vr(Qt,2)}, 0",
            f"v_mfma_f32_32x32x16_bf16 {vr(S,16)}, {vr(m,4)}, {vr(Qm,4)}, {vr(S,16)}"]

def pv(O, vbuf, P):
    return [f"v_mfma_f32_32x32x16_bf16 {vr(O,16)}, {vr(VF[vbuf]+4*j,4)}, {vr(P+4*j,4)}, {vr(O,16)}" for j in range(2)]

def phase(a, S, P, mfmas):
    for g in range(4):
        a(mfmas[g])
        for i in range(4*g, 4*g+4):
            a(f"v_exp_f32 {vr(S+i)}, {vr(S+i)}")
        a(f"v_cvt_pk_bf16_f32 {vr(P+2*g)}, {vr(S+4*g)}, {vr(S+4*g+1)}")
        a(f"v_cvt_pk_bf16_f32 {vr(P+2*g+1)}, {vr(S+4*g+2)}, {vr(S+4*g+3)}")

def gen():
    a = Asm()
    name = "standalone__qk_norm__prompt_kernel"
    hdr = f"""; qk-norm attention, hand-written generator (gen/gen1.py)
; @launch grid=(256,1,1) block=(512,1,1) lds={LDS}
.amdgcn_target "amdgcn-amd-amdhsa--gfx950"
.text
.globl {name}
.p2align 8
.type {name},@function
{name}:
"""
    a(f"""
    s_cmp_ge_u32 s2, 256
    s_cbranch_scc1 L_end
    s_load_dwordx4 s[20:23], s[0:1], 0
    s_load_dwordx4 s[24:27], s[0:1], 16
    s_load_dwordx2 s[28:29], s[0:1], 32
    s_and_b32 s{S_BH}, s2, 7
    s_lshr_b32 s3, s2, 5
    s_lshl_b32 s3, s3, 3
    s_add_u32 s{S_BH}, s{S_BH}, s3
    s_lshr_b32 s{S_QB}, s2, 3
    s_and_b32 s{S_QB}, s{S_QB}, 3
    v_and_b32 {vr(V_LANE)}, 63, {vr(V_TID)}
    v_lshrrev_b32 {vr(T0)}, 6, {vr(V_TID)}
    s_mul_i32 s35, s{S_BH}, {HEADB}
    v_readfirstlane_b32 s{S_WAVE}, {vr(T0)}
    s_mul_i32 s45, s{S_QB}, {512*40}
    s_add_u32 s45, s45, s35
    s_and_b32 s46, s{S_BH}, 31
    s_lshl_b32 s46, s46, 1
    s_and_b32 s47, s46, 0x7c
    s_lshr_b32 s{S_ROLE}, s{S_WAVE}, 2
    s_waitcnt lgkmcnt(0)
    s_load_dword s{S_T}, s[26:27], s47
    s_add_u32 s{SRD_K}, s22, s35
    s_addc_u32 s{SRD_K+1}, s23, 0
    s_mov_b32 s{SRD_K+2}, {HEADB}
    s_mov_b32 s{SRD_K+3}, 0x00020000
    s_add_u32 s{SRD_V}, s24, s35
    s_addc_u32 s{SRD_V+1}, s25, 0
    s_mov_b32 s{SRD_V+2}, {HEADB}
    s_mov_b32 s{SRD_V+3}, 0x00020000
    s_add_u32 s{SRD_Q}, s20, s45
    s_addc_u32 s{SRD_Q+1}, s21, 0
    s_mov_b32 s{SRD_Q+2}, {512*40}
    s_mov_b32 s{SRD_Q+3}, 0x00020000
    s_add_u32 s{SRD_O}, s28, s45
    s_addc_u32 s{SRD_O+1}, s29, 0
    s_mov_b32 s{SRD_O+2}, {512*40}
    s_mov_b32 s{SRD_O+3}, 0x00020000
    s_cmp_eq_u32 s{S_ROLE}, 0
    s_cselect_b32 s{SRD_S}, s{SRD_K}, s{SRD_V}
    s_cselect_b32 s{SRD_S+1}, s{SRD_K+1}, s{SRD_V+1}
    s_mov_b32 s{SRD_S+2}, {HEADB}
    s_mov_b32 s{SRD_S+3}, 0x00020000
    """)
    a.c("lane decomposition")
    a(f"""
    v_and_b32 {vr(T0)}, 31, {vr(V_LANE)}
    v_lshrrev_b32 {vr(T1)}, 5, {vr(V_LANE)}
    """)
    a.c("Q loads: voffset = (wave*64 + n)*40 + 16h ; tail: h==0 ? row*40+32 : OOB")
    a(f"""
    s_lshl_b32 s3, s{S_WAVE}, 6
    v_add_u32 {vr(T2)}, s3, {vr(T0)}
    v_mul_u32_u24 {vr(T2)}, 40, {vr(T2)}
    v_lshl_add_u32 {vr(T3)}, {vr(T1)}, 4, {vr(T2)}
    v_lshl_add_u32 {vr(SU)}, {vr(T1)}, 24, {vr(T2)}
    buffer_load_dwordx4 {vr(QAm,4)}, {vr(T3)}, s[{SRD_Q}:{SRD_Q+3}], 0 offen
    buffer_load_dwordx2 {vr(QAt,2)}, {vr(SU)}, s[{SRD_Q}:{SRD_Q+3}], 0 offen offset:32
    buffer_load_dwordx4 {vr(QBm,4)}, {vr(T3)}, s[{SRD_Q}:{SRD_Q+3}], 0 offen offset:{32*40}
    buffer_load_dwordx2 {vr(QBt,2)}, {vr(SU)}, s[{SRD_Q}:{SRD_Q+3}], 0 offen offset:{32*40+32}
    """)
    a.c("staging addresses")
    a(f"""
    v_and_b32 {vr(T2)}, 255, {vr(V_TID)}
    v_mul_u32_u24 {vr(V_GOFF)}, 40, {vr(T2)}
    s_mov_b32 s{S_GOFF}, 0
    """)
    emit_stage_loads(a)
    a(f"""
    s_cmp_eq_u32 s{S_ROLE}, 0
    s_cselect_b32 s3, 16, 48
    v_mul_u32_u24 {vr(V_WL)}, s3, {vr(T2)}
    v_lshlrev_b32 {vr(V_WL2)}, 3, {vr(T2)}
    """)
    a.c("LDS constants: K role writes KB1 plane [1,1,0,0]; V role writes ones chunk [1,0,0,0] at +40")
    a(f"""
    s_mov_b32 s49, 0x3f803f80
    s_mov_b32 s48, 0x00003f80
    s_cselect_b32 s3, s49, s48
    v_mov_b32 {vr(SU+2)}, s3
    v_mov_b32 {vr(SU+3)}, 0
    s_mov_b32 s48, {KB1}
    s_mov_b32 s49, {VOFF+40}
    s_cselect_b32 s3, s48, s49
    v_mov_b32 {vr(SU+4)}, s3
    v_add_u32 {vr(SU+5)}, {vr(SU+4)}, {vr(V_WL)}
    v_add_u32 {vr(SU+4)}, {vr(SU+4)}, {vr(V_WL2)}
    s_cselect_b64 vcc, -1, 0
    v_cndmask_b32 {vr(SU+4)}, {vr(SU+5)}, {vr(SU+4)}, vcc
    """)
    for b in range(NBUF):
        a(f"ds_write_b64 {vr(SU+4)}, {vr(SU+2,2)} offset:{b*BUF}")
    a.c("read lane parts")
    a(f"""
    v_and_b32 {vr(T2)}, 0x13, {vr(T0)}
    v_and_b32 {vr(T3)}, 4, {vr(T0)}
    v_lshl_or_b32 {vr(T2)}, {vr(T3)}, 1, {vr(T2)}
    v_and_b32 {vr(T3)}, 8, {vr(T0)}
    v_lshrrev_b32 {vr(T3)}, 1, {vr(T3)}
    v_or_b32 {vr(T2)}, {vr(T2)}, {vr(T3)}
    v_lshlrev_b32 {vr(V_KL)}, 4, {vr(T2)}
    v_lshl_add_u32 {vr(V_KL)}, {vr(T1)}, 12, {vr(V_KL)}
    v_lshlrev_b32 {vr(V_KBL)}, 3, {vr(T2)}
    v_lshl_add_u32 {vr(V_KBL)}, {vr(T1)}, 11, {vr(V_KBL)}
    v_add_u32 {vr(V_KBL)}, {KB0}, {vr(V_KBL)}
    """)
    a(f"""
    v_bfe_u32 {vr(T2)}, {vr(V_LANE)}, 2, 2
    v_lshl_add_u32 {vr(T2)}, {vr(T1)}, 3, {vr(T2)}
    v_mul_u32_u24 {vr(V_VL)}, 48, {vr(T2)}
    v_and_b32 {vr(T2)}, 3, {vr(V_LANE)}
    v_min_u32 {vr(T3)}, 1, {vr(T2)}
    v_add_u32 {vr(T3)}, 4, {vr(T3)}
    v_and_b32 {vr(SU)}, 16, {vr(V_LANE)}
    v_cmp_ne_u32 vcc, 0, {vr(SU)}
    s_nop 1
    v_cndmask_b32 {vr(T2)}, {vr(T2)}, {vr(T3)}, vcc
    v_lshl_add_u32 {vr(V_VL)}, {vr(T2)}, 3, {vr(V_VL)}
    v_add_u32 {vr(V_VL)}, {VOFF}, {vr(V_VL)}
    """)
    a.c("t -> scale")
    a(f"""
    s_waitcnt lgkmcnt(0)
    s_and_b32 s46, s46, 2
    s_lshl_b32 s46, s46, 3
    s_lshr_b32 s{S_T}, s{S_T}, s46
    s_lshl_b32 s{S_T}, s{S_T}, 16
    v_mov_b32 {vr(T3)}, s{S_T}
    v_mul_f32 {vr(T3)}, 0x{LOG2E:08x}, {vr(T3)}
    """)
    a(f"""
    v_or_b32 {vr(V_BIAS)}, 0x80000000, {vr(T3)}
    v_cvt_pk_bf16_f32 {vr(V_BIAS)}, {vr(V_BIAS)}, 0
    v_cmp_ne_u32 vcc, 0, {vr(T1)}
    s_nop 1
    v_cndmask_b32 {vr(V_BIAS)}, 0, {vr(V_BIAS)}, vcc
    """)
    a.c("Q normalisation")
    a("s_waitcnt vmcnt(3)")
    for (Qm, Qt) in ((QAm, QAt), (QBm, QBt)):
        a(f"v_dot2_f32_bf16 {vr(T0)}, {vr(Qm)}, {vr(Qm)}, 0")
        a(f"v_dot2_f32_bf16 {vr(T1)}, {vr(Qm+1)}, {vr(Qm+1)}, 0")
        a(f"v_dot2_f32_bf16 {vr(T0)}, {vr(Qm+2)}, {vr(Qm+2)}, {vr(T0)}")
        a(f"v_dot2_f32_bf16 {vr(T1)}, {vr(Qm+3)}, {vr(Qm+3)}, {vr(T1)}")
        a(f"v_dot2_f32_bf16 {vr(T0)}, {vr(Qt)}, {vr(Qt)}, {vr(T0)}")
        a(f"v_dot2_f32_bf16 {vr(T1)}, {vr(Qt+1)}, {vr(Qt+1)}, {vr(T1)}")
        regs = [Qm, Qm+1, Qm+2, Qm+3, Qt, Qt+1]
        for i, r in enumerate(regs):
            a(f"v_lshlrev_b32 {vr(SU+2*i)}, 16, {vr(r)}")
            a(f"v_and_b32 {vr(SU+2*i+1)}, 0xffff0000, {vr(r)}")
        a(f"v_add_f32 {vr(T0)}, {vr(T0)}, {vr(T1)}")
        a("s_nop 1")
        a(f"v_mov_b32 {vr(T1)}, {vr(T0)}")
        a("s_nop 1")
        a(f"v_permlane32_swap_b32 {vr(T0)}, {vr(T1)}")
        a("s_nop 1")
        a(f"v_add_f32 {vr(T0)}, {vr(T0)}, {vr(T1)}")
        a(f"v_sqrt_f32 {vr(T0)}, {vr(T0)}")
        a("s_nop 0")
        a(f"v_add_f32 {vr(T0)}, 0x358637bd, {vr(T0)}")
        a(f"v_rcp_f32 {vr(T0)}, {vr(T0)}")
        a("s_nop 0")
        a(f"v_mul_f32 {vr(T0)}, {vr(T0)}, {vr(T3)}")
        for i in range(12):
            a(f"v_mul_f32 {vr(SU+i)}, {vr(SU+i)}, {vr(T0)}")
        for i, r in enumerate(regs):
            a(f"v_cvt_pk_bf16_f32 {vr(r)}, {vr(SU+2*i)}, {vr(SU+2*i+1)}")
    a.c("fallback check: |t| > 16 -> true max pass")
    a(f"""
    s_and_b32 s3, s{S_T}, 0x7fffffff
    s_cmp_gt_u32 s3, 0x41800000
    s_cbranch_scc1 L_fallback
    """)
    a.label("L_bias_ready")
    a(f"v_or_b32 {vr(QAt)}, {vr(QAt)}, {vr(V_BIAS)}")
    a(f"v_or_b32 {vr(QBt)}, {vr(QBt)}, {vr(V_BIAS)}")
    a.label("L_main_start")
    a.c("stage chunk 0 into buffer 0")
    a(f"s_mov_b32 s{S_WB}, 0")
    emit_stage_write(a)
    a(f"s_mov_b32 s{S_GOFF}, {CH*40}")
    emit_stage_loads(a)
    a.c("init accumulators")
    for i in range(16):
        a(f"v_mov_b32 {vr(OA+i)}, 0")
        a(f"v_mov_b32 {vr(OB+i)}, 0")
    for i in range(8):
        a(f"v_mov_b32 {vr(PB+i)}, 0")
        a(f"v_mov_b32 {vr(VF[1]+i)}, 0")
    a(f"""
    s_mov_b32 s{S_RB}, 0
    s_mov_b32 s{S_WB}, {BUF}
    s_mov_b32 s{S_CNT}, {NCH}
    v_mov_b32 {vr(V_KADDR)}, {vr(V_KL)}
    v_mov_b32 {vr(V_KBADDR)}, {vr(V_KBL)}
    s_waitcnt lgkmcnt(0)
    s_barrier
    """)
    k_reads(a, 0, 0)
    a("s_waitcnt lgkmcnt(0)")
    for m in qk(SA, 0, QAm, QAt):
        a(m)
    a("s_nop 7")
    a("s_nop 3")
    a(".p2align 6") if False else None
    a.label("L_loop")
    a(f"v_add_u32 {vr(V_VADDR)}, s{S_RB}, {vr(V_VL)}")
    a(f"""
    s_add_u32 s{S_RN}, s{S_RB}, {BUF}
    s_cmp_eq_u32 s{S_RN}, {BUF*NBUF}
    s_cselect_b32 s{S_RN}, 0, s{S_RN}
    """)
    for kt in range(8):
        kb, vb = kt % 2, kt % 2
        if kt == 7:
            a(f"v_add_u32 {vr(V_KADDR)}, s{S_RN}, {vr(V_KL)}")
            a(f"v_add_u32 {vr(V_KBADDR)}, s{S_RN}, {vr(V_KBL)}")
        k_reads(a, (kt+1) % 2, (kt+1) % 8)
        v_reads(a, vb, kt)
        if kt == 0:
            emit_stage_write(a)
        phase(a, SA, PA, qk(SB, kb, QBm, QBt) + pv(OB, (kt+1) % 2, PB))
        a("s_waitcnt lgkmcnt(0)")
        if kt == 3:
            a("s_barrier")
        if kt == 4:
            a(f"s_add_u32 s{S_GOFF}, s{S_GOFF}, {CH*40}")
            emit_stage_loads(a)
        phase(a, SB, PB, qk(SA, (kt+1) % 2, QAm, QAt) + pv(OA, vb, PA))
    a(f"""
    s_mov_b32 s{S_RB}, s{S_RN}
    s_add_u32 s{S_WB}, s{S_WB}, {BUF}
    s_cmp_eq_u32 s{S_WB}, {BUF*NBUF}
    s_cselect_b32 s{S_WB}, 0, s{S_WB}
    s_sub_u32 s{S_CNT}, s{S_CNT}, 1
    s_cmp_lg_u32 s{S_CNT}, 0
    s_cbranch_scc1 L_loop
    """)
    a.c("tail: PV_B(last)")
    a("s_nop 1")
    for m in pv(OB, 1, PB):
        a(m)
    a.c("epilogue")
    a(f"""
    v_and_b32 {vr(T0)}, 31, {vr(V_LANE)}
    v_lshrrev_b32 {vr(T1)}, 5, {vr(V_LANE)}
    s_lshl_b32 s3, s{S_WAVE}, 6
    v_add_u32 {vr(T2)}, s3, {vr(T0)}
    v_mul_u32_u24 {vr(T2)}, 40, {vr(T2)}
    v_lshl_add_u32 {vr(T3)}, {vr(T1)}, 3, {vr(T2)}
    v_lshl_add_u32 {vr(SU+20)}, {vr(T1)}, 24, {vr(T2)}
    v_cmp_ne_u32 vcc, 0, {vr(T1)}
    s_nop 7
    s_nop 7
    """)
    for ti, O in enumerate((OA, OB)):
        a(f"v_rcp_f32 {vr(T0)}, {vr(O+12)}")
        a("s_nop 0")
        for i in range(12):
            a(f"v_mul_f32 {vr(SU+i)}, {vr(O+i)}, {vr(T0)}")
        for i in range(6):
            a(f"v_cvt_pk_bf16_f32 {vr(ST+i)}, {vr(SU+2*i)}, {vr(SU+2*i+1)}")
        o = ti*32*40
        a(f"buffer_store_dwordx2 {vr(ST,2)}, {vr(T3)}, s[{SRD_O}:{SRD_O+3}], 0 offen offset:{o}")
        a(f"buffer_store_dwordx2 {vr(ST+2,2)}, {vr(T3)}, s[{SRD_O}:{SRD_O+3}], 0 offen offset:{o+16}")
        a(f"buffer_store_dwordx2 {vr(ST+4,2)}, {vr(SU+20)}, s[{SRD_O}:{SRD_O+3}], 0 offen offset:{o+32}")
        a("s_nop 1")
    a.label("L_end")
    a("s_endpgm")
    a.label("L_fallback")
    a(f"""
    s_waitcnt vmcnt(0)
    v_mov_b32 {vr(OA)}, 0xff800000
    v_mov_b32 {vr(OB)}, 0xff800000
    s_mov_b32 s{S_GOFF}, 0
    s_mov_b32 s{S_WB}, 0
    s_mov_b32 s{S_CNT}, {NCH}
    """)
    a.label("L_fb_chunk")
    emit_stage_loads(a)
    emit_stage_write(a)
    a(f"""
    s_waitcnt lgkmcnt(0)
    s_barrier
    v_mov_b32 {vr(V_KADDR)}, {vr(V_KL)}
    v_mov_b32 {vr(V_KBADDR)}, {vr(V_KBL)}
    s_mov_b32 s3, 8
    """)
    a.label("L_fb_tile")
    k_reads(a, 0, 0)
    a("s_waitcnt lgkmcnt(0)")
    for m in qk(SA, 0, QAm, QAt) + qk(SB, 0, QBm, QBt):
        a(m)
    a("s_nop 7\ns_nop 7")
    for S, O in ((SA, OA), (SB, OB)):
        for i in range(0, 16, 2):
            a(f"v_max3_f32 {vr(O)}, {vr(S+i)}, {vr(S+i+1)}, {vr(O)}")
    a(f"""
    v_add_u32 {vr(V_KADDR)}, 512, {vr(V_KADDR)}
    v_add_u32 {vr(V_KBADDR)}, 256, {vr(V_KBADDR)}
    s_sub_u32 s3, s3, 1
    s_cmp_lg_u32 s3, 0
    s_cbranch_scc1 L_fb_tile
    s_barrier
    s_add_u32 s{S_GOFF}, s{S_GOFF}, {CH*40}
    s_sub_u32 s{S_CNT}, s{S_CNT}, 1
    s_cmp_lg_u32 s{S_CNT}, 0
    s_cbranch_scc1 L_fb_chunk
    v_lshrrev_b32 {vr(T3)}, 5, {vr(V_LANE)}
    v_cmp_ne_u32 vcc, 0, {vr(T3)}
    """)
    for O, Qt in ((OA, QAt), (OB, QBt)):
        a(f"""
        v_mov_b32 {vr(T1)}, {vr(O)}
        s_nop 1
        v_permlane32_swap_b32 {vr(O)}, {vr(T1)}
        s_nop 1
        v_max_f32 {vr(T0)}, {vr(O)}, {vr(T1)}
        v_sub_f32 {vr(T0)}, 0, {vr(T0)}
        v_cvt_pk_bf16_f32 {vr(T1)}, {vr(T0)}, 0
        v_lshlrev_b32 {vr(T2)}, 16, {vr(T1)}
        v_sub_f32 {vr(T2)}, {vr(T0)}, {vr(T2)}
        v_cvt_pk_bf16_f32 {vr(T1)}, {vr(T0)}, {vr(T2)}
        v_cndmask_b32 {vr(T1)}, 0, {vr(T1)}, vcc
        v_or_b32 {vr(Qt)}, {vr(Qt)}, {vr(T1)}
        """)
    a(f"s_mov_b32 s{S_GOFF}, 0")
    emit_stage_loads(a)
    a("s_branch L_main_start")
    ftr = f"""
.section .rodata,"a"
.p2align 6
.amdhsa_kernel {name}
  .amdhsa_next_free_vgpr {NV}
  .amdhsa_next_free_sgpr 102
  .amdhsa_accum_offset {NV}
  .amdhsa_group_segment_fixed_size 0
  .amdhsa_kernarg_size 56
  .amdhsa_user_sgpr_count 2
  .amdhsa_user_sgpr_kernarg_segment_ptr 1
  .amdhsa_system_sgpr_workgroup_id_x 1
.end_amdhsa_kernel
"""
    return hdr + a.text() + ftr

if __name__ == "__main__":
    out = sys.argv[1] if len(sys.argv) > 1 else "standalone__qk_norm__prompt.s"
    open(out, "w").write(gen())
```

```python
import sys

class Asm:
    def __init__(self):
        self.l = []
    def __call__(self, s):
        for x in s.strip("\n").split("\n"):
            x = x.strip()
            if x:
                self.l.append("  " + x)
    def label(self, s):
        self.l.append(s + ":")
    def c(self, s):
        self.l.append("  ; " + s)
    def text(self):
        return "\n".join(self.l) + "\n"

def vr(a, n=1):
    return f"v{a}" if n == 1 else f"v[{a}:{a+n-1}]"

CH = 256
NCH = 2048 // CH
KA0, KA1, KB0, KB1, VOFF = 0, 4096, 8192, 10240, 12288
BUF = 24576
NBUF = 3
LDS = BUF * NBUF
HEADB = 2048 * 40
V_TID, V_LANE = 0, 1
V_KADDR, V_KBADDR, V_VADDR = 2, 3, 4
V_KL, V_KBL, V_VL = 5, 6, 7
V_GOFF, V_WL, V_WL2, V_WA, V_WA2 = 8, 9, 10, 11, 12
T0, T1, T2, T3 = 14, 15, 16, 17
V_BIAS = 13
SA, SB, OA, OB = 20, 36, 52, 68
PA, PB = 84, 92
QAm, QAt, QBm, QBt = 100, 104, 106, 110
KF = [(112, 116), (118, 122)]
VF = [124, 132]
ST = 140
SU = 150
NV = 172

S_WAVE, S_ROLE, S_BH, S_QB = 32, 33, 30, 31
S_RB, S_WB, S_RN = 40, 41, 42
S_GOFF = 43
S_CNT = 44
S_T = 34
SRD_K, SRD_V, SRD_Q, SRD_O, SRD_S = 8, 12, 4, 16, 36

LOG2E = 0x3fb8aa3b

def emit_stage_compute_K(a):
    a(f"v_dot2_f32_bf16 {vr(T0)}, {vr(ST)}, {vr(ST)}, 0")
    a(f"v_dot2_f32_bf16 {vr(T1)}, {vr(ST+1)}, {vr(ST+1)}, 0")
    for i in range(2, 10, 2):
        a(f"v_dot2_f32_bf16 {vr(T0)}, {vr(ST+i)}, {vr(ST+i)}, {vr(T0)}")
        a(f"v_dot2_f32_bf16 {vr(T1)}, {vr(ST+i+1)}, {vr(ST+i+1)}, {vr(T1)}")
    for i in range(10):
        a(f"v_lshlrev_b32 {vr(SU+2*i)}, 16, {vr(ST+i)}")
        a(f"v_and_b32 {vr(SU+2*i+1)}, 0xffff0000, {vr(ST+i)}")
    a(f"v_add_f32 {vr(T0)}, {vr(T0)}, {vr(T1)}")
    a(f"v_sqrt_f32 {vr(T0)}, {vr(T0)}")
    a("s_nop 0")
    a(f"v_add_f32 {vr(T0)}, 0x358637bd, {vr(T0)}")
    a(f"v_rcp_f32 {vr(T2)}, {vr(T0)}")
    a("s_nop 0")
    for i in range(10):
        a(f"v_pk_mul_f32 {vr(SU+2*i,2)}, {vr(SU+2*i,2)}, {vr(T2,2)} op_sel_hi:[1,0]")
    for i in range(10):
        a(f"v_cvt_pk_bf16_f32 {vr(ST+i)}, {vr(SU+2*i)}, {vr(SU+2*i+1)}")
    a(f"ds_write_b128 {vr(V_WA)}, {vr(ST,4)} offset:{KA0}")
    a(f"ds_write_b128 {vr(V_WA)}, {vr(ST+4,4)} offset:{KA1}")
    a(f"ds_write_b64 {vr(V_WA2)}, {vr(ST+8,2)} offset:{KB0}")

def emit_stage_compute_V(a):
    a(f"ds_write_b128 {vr(V_WA)}, {vr(ST,4)} offset:{VOFF}")
    a(f"ds_write_b128 {vr(V_WA)}, {vr(ST+4,4)} offset:{VOFF+16}")
    a(f"ds_write_b64 {vr(V_WA)}, {vr(ST+8,2)} offset:{VOFF+32}")

def emit_stage_loads(a):
    a(f"buffer_load_dwordx4 {vr(ST,4)}, {vr(V_GOFF)}, s[{SRD_S}:{SRD_S+3}], s{S_GOFF} offen")
    a(f"buffer_load_dwordx4 {vr(ST+4,4)}, {vr(V_GOFF)}, s[{SRD_S}:{SRD_S+3}], s{S_GOFF} offen offset:16")
    a(f"buffer_load_dwordx2 {vr(ST+8,2)}, {vr(V_GOFF)}, s[{SRD_S}:{SRD_S+3}], s{S_GOFF} offen offset:32")

uid = [0]
def emit_stage_write(a):
    uid[0] += 1
    u = uid[0]
    a(f"v_add_u32 {vr(V_WA)}, s{S_WB}, {vr(V_WL)}")
    a(f"v_add_u32 {vr(V_WA2)}, s{S_WB}, {vr(V_WL2)}")
    a("s_waitcnt vmcnt(0)")
    a(f"s_cmp_lg_u32 s{S_ROLE}, 0")
    a(f"s_cbranch_scc1 L_stV{u}")
    emit_stage_compute_K(a)
    a(f"s_branch L_stE{u}")
    a.label(f"L_stV{u}")
    emit_stage_compute_V(a)
    a.label(f"L_stE{u}")

def k_reads(a, buf, tile):
    m, t = KF[buf]
    a(f"ds_read_b128 {vr(m,4)}, {vr(V_KADDR)} offset:{tile*512}")
    a(f"ds_read_b64 {vr(t,2)}, {vr(V_KBADDR)} offset:{tile*256}")

def v_reads(a, buf, tile):
    for j in range(2):
        for half in range(2):
            off = (tile*32 + 16*j + 4*half) * 48
            a(f"ds_read_b64_tr_b16 {vr(VF[buf] + 4*j + 2*half, 2)}, {vr(V_VADDR)} offset:{off}")

def qk(S, kbuf, Qm, Qt):
    m, t = KF[kbuf]
    return [f"v_mfma_f32_32x32x8_bf16 {vr(S,16)}, {vr(t,2)}, {vr(Qt,2)}, 0",
            f"v_mfma_f32_32x32x16_bf16 {vr(S,16)}, {vr(m,4)}, {vr(Qm,4)}, {vr(S,16)}"]

def pv(O, vbuf, P):
    return [f"v_mfma_f32_32x32x16_bf16 {vr(O,16)}, {vr(VF[vbuf]+4*j,4)}, {vr(P+4*j,4)}, {vr(O,16)}" for j in range(2)]

def phase(a, S, P, mfmas):
    for g in range(4):
        a(mfmas[g])
        for i in range(4*g, 4*g+4):
            a(f"v_exp_f32 {vr(S+i)}, {vr(S+i)}")
        a(f"v_cvt_pk_bf16_f32 {vr(P+2*g)}, {vr(S+4*g)}, {vr(S+4*g+1)}")
        a(f"v_cvt_pk_bf16_f32 {vr(P+2*g+1)}, {vr(S+4*g+2)}, {vr(S+4*g+3)}")

DBG = "--dbg" in sys.argv
def ts(a, i):
    if DBG:
        a(f"s_memtime s[{60+2*i}:{61+2*i}]")

def gen():
    a = Asm()
    dbg_head = "s_memtime s[60:61]\ns_memrealtime s[70:71]\ns_load_dwordx2 s[58:59], s[0:1], 40" if DBG else ""
    name = "standalone__qk_norm__prompt_kernel"
    hdr = f"""; qk-norm attention, hand-written generator (gen/gen1.py)
; @launch grid=(256,1,1) block=(512,1,1) lds={LDS}
.amdgcn_target "amdgcn-amd-amdhsa--gfx950"
.text
.globl {name}
.p2align 8
.type {name},@function
{name}:
"""
    a(f"""
    s_cmp_ge_u32 s2, 256
    s_cbranch_scc1 L_end
    {dbg_head}
    s_load_dwordx4 s[20:23], s[0:1], 0
    s_load_dwordx4 s[24:27], s[0:1], 16
    s_load_dwordx2 s[28:29], s[0:1], 32
    s_and_b32 s{S_BH}, s2, 7
    s_lshr_b32 s3, s2, 5
    s_lshl_b32 s3, s3, 3
    s_add_u32 s{S_BH}, s{S_BH}, s3
    s_lshr_b32 s{S_QB}, s2, 3
    s_and_b32 s{S_QB}, s{S_QB}, 3
    v_and_b32 {vr(V_LANE)}, 63, {vr(V_TID)}
    v_lshrrev_b32 {vr(T0)}, 6, {vr(V_TID)}
    s_mul_i32 s35, s{S_BH}, {HEADB}
    v_readfirstlane_b32 s{S_WAVE}, {vr(T0)}
    s_mul_i32 s45, s{S_QB}, {512*40}
    s_add_u32 s45, s45, s35
    s_and_b32 s46, s{S_BH}, 31
    s_lshl_b32 s46, s46, 1
    s_and_b32 s47, s46, 0x7c
    s_lshr_b32 s{S_ROLE}, s{S_WAVE}, 2
    s_waitcnt lgkmcnt(0)
    s_load_dword s{S_T}, s[26:27], s47
    s_add_u32 s{SRD_K}, s22, s35
    s_addc_u32 s{SRD_K+1}, s23, 0
    s_mov_b32 s{SRD_K+2}, {HEADB}
    s_mov_b32 s{SRD_K+3}, 0x00020000
    s_add_u32 s{SRD_V}, s24, s35
    s_addc_u32 s{SRD_V+1}, s25, 0
    s_mov_b32 s{SRD_V+2}, {HEADB}
    s_mov_b32 s{SRD_V+3}, 0x00020000
    s_add_u32 s{SRD_Q}, s20, s45
    s_addc_u32 s{SRD_Q+1}, s21, 0
    s_mov_b32 s{SRD_Q+2}, {512*40}
    s_mov_b32 s{SRD_Q+3}, 0x00020000
    s_add_u32 s{SRD_O}, s28, s45
    s_addc_u32 s{SRD_O+1}, s29, 0
    s_mov_b32 s{SRD_O+2}, {512*40}
    s_mov_b32 s{SRD_O+3}, 0x00020000
    s_cmp_eq_u32 s{S_ROLE}, 0
    s_cselect_b32 s{SRD_S}, s{SRD_K}, s{SRD_V}
    s_cselect_b32 s{SRD_S+1}, s{SRD_K+1}, s{SRD_V+1}
    s_mov_b32 s{SRD_S+2}, {HEADB}
    s_mov_b32 s{SRD_S+3}, 0x00020000
    """)
    a.c("lane decomposition")
    a(f"""
    v_and_b32 {vr(T0)}, 31, {vr(V_LANE)}
    v_lshrrev_b32 {vr(T1)}, 5, {vr(V_LANE)}
    """)
    a.c("Q loads: voffset = (wave*64 + n)*40 + 16h ; tail: h==0 ? row*40+32 : OOB")
    a(f"""
    s_lshl_b32 s3, s{S_WAVE}, 6
    v_add_u32 {vr(T2)}, s3, {vr(T0)}
    v_mul_u32_u24 {vr(T2)}, 40, {vr(T2)}
    v_lshl_add_u32 {vr(T3)}, {vr(T1)}, 4, {vr(T2)}
    v_lshl_add_u32 {vr(SU)}, {vr(T1)}, 24, {vr(T2)}
    buffer_load_dwordx4 {vr(QAm,4)}, {vr(T3)}, s[{SRD_Q}:{SRD_Q+3}], 0 offen
    buffer_load_dwordx2 {vr(QAt,2)}, {vr(SU)}, s[{SRD_Q}:{SRD_Q+3}], 0 offen offset:32
    buffer_load_dwordx4 {vr(QBm,4)}, {vr(T3)}, s[{SRD_Q}:{SRD_Q+3}], 0 offen offset:{32*40}
    buffer_load_dwordx2 {vr(QBt,2)}, {vr(SU)}, s[{SRD_Q}:{SRD_Q+3}], 0 offen offset:{32*40+32}
    """)
    a.c("staging addresses")
    a(f"""
    v_and_b32 {vr(T2)}, 255, {vr(V_TID)}
    v_mul_u32_u24 {vr(V_GOFF)}, 40, {vr(T2)}
    s_mov_b32 s{S_GOFF}, 0
    """)
    emit_stage_loads(a)
    a(f"""
    s_cmp_eq_u32 s{S_ROLE}, 0
    s_cselect_b32 s3, 16, 48
    v_mul_u32_u24 {vr(V_WL)}, s3, {vr(T2)}
    v_lshlrev_b32 {vr(V_WL2)}, 3, {vr(T2)}
    """)
    a.c("LDS constants: K role writes KB1 plane [1,1,0,0]; V role writes ones chunk [1,0,0,0] at +40")
    a(f"""
    s_mov_b32 s49, 0x3f803f80
    s_mov_b32 s48, 0x00003f80
    s_cselect_b32 s3, s49, s48
    v_mov_b32 {vr(SU+2)}, s3
    v_mov_b32 {vr(SU+3)}, 0
    s_mov_b32 s48, {KB1}
    s_mov_b32 s49, {VOFF+40}
    s_cselect_b32 s3, s48, s49
    v_mov_b32 {vr(SU+4)}, s3
    v_add_u32 {vr(SU+5)}, {vr(SU+4)}, {vr(V_WL)}
    v_add_u32 {vr(SU+4)}, {vr(SU+4)}, {vr(V_WL2)}
    s_cselect_b64 vcc, -1, 0
    v_cndmask_b32 {vr(SU+4)}, {vr(SU+5)}, {vr(SU+4)}, vcc
    """)
    for b in range(NBUF):
        a(f"ds_write_b64 {vr(SU+4)}, {vr(SU+2,2)} offset:{b*BUF}")
    a.c("read lane parts")
    a(f"""
    v_and_b32 {vr(T2)}, 0x13, {vr(T0)}
    v_and_b32 {vr(T3)}, 4, {vr(T0)}
    v_lshl_or_b32 {vr(T2)}, {vr(T3)}, 1, {vr(T2)}
    v_and_b32 {vr(T3)}, 8, {vr(T0)}
    v_lshrrev_b32 {vr(T3)}, 1, {vr(T3)}
    v_or_b32 {vr(T2)}, {vr(T2)}, {vr(T3)}
    v_lshlrev_b32 {vr(V_KL)}, 4, {vr(T2)}
    v_lshl_add_u32 {vr(V_KL)}, {vr(T1)}, 12, {vr(V_KL)}
    v_lshlrev_b32 {vr(V_KBL)}, 3, {vr(T2)}
    v_lshl_add_u32 {vr(V_KBL)}, {vr(T1)}, 11, {vr(V_KBL)}
    v_add_u32 {vr(V_KBL)}, {KB0}, {vr(V_KBL)}
    """)
    a(f"""
    v_bfe_u32 {vr(T2)}, {vr(V_LANE)}, 2, 2
    v_lshl_add_u32 {vr(T2)}, {vr(T1)}, 3, {vr(T2)}
    v_mul_u32_u24 {vr(V_VL)}, 48, {vr(T2)}
    v_and_b32 {vr(T2)}, 3, {vr(V_LANE)}
    v_min_u32 {vr(T3)}, 1, {vr(T2)}
    v_add_u32 {vr(T3)}, 4, {vr(T3)}
    v_and_b32 {vr(SU)}, 16, {vr(V_LANE)}
    v_cmp_ne_u32 vcc, 0, {vr(SU)}
    s_nop 1
    v_cndmask_b32 {vr(T2)}, {vr(T2)}, {vr(T3)}, vcc
    v_lshl_add_u32 {vr(V_VL)}, {vr(T2)}, 3, {vr(V_VL)}
    v_add_u32 {vr(V_VL)}, {VOFF}, {vr(V_VL)}
    """)
    a.c("t -> scale")
    a(f"""
    s_waitcnt lgkmcnt(0)
    s_and_b32 s46, s46, 2
    s_lshl_b32 s46, s46, 3
    s_lshr_b32 s{S_T}, s{S_T}, s46
    s_lshl_b32 s{S_T}, s{S_T}, 16
    v_mov_b32 {vr(T3)}, s{S_T}
    v_mul_f32 {vr(T3)}, 0x{LOG2E:08x}, {vr(T3)}
    """)
    a(f"""
    v_or_b32 {vr(V_BIAS)}, 0x80000000, {vr(T3)}
    v_cvt_pk_bf16_f32 {vr(V_BIAS)}, {vr(V_BIAS)}, 0
    v_cmp_ne_u32 vcc, 0, {vr(T1)}
    s_nop 1
    v_cndmask_b32 {vr(V_BIAS)}, 0, {vr(V_BIAS)}, vcc
    """)
    a.c("Q normalisation")
    a("s_waitcnt vmcnt(3)")
    for (Qm, Qt) in ((QAm, QAt), (QBm, QBt)):
        a(f"v_dot2_f32_bf16 {vr(T0)}, {vr(Qm)}, {vr(Qm)}, 0")
        a(f"v_dot2_f32_bf16 {vr(T1)}, {vr(Qm+1)}, {vr(Qm+1)}, 0")
        a(f"v_dot2_f32_bf16 {vr(T0)}, {vr(Qm+2)}, {vr(Qm+2)}, {vr(T0)}")
        a(f"v_dot2_f32_bf16 {vr(T1)}, {vr(Qm+3)}, {vr(Qm+3)}, {vr(T1)}")
        a(f"v_dot2_f32_bf16 {vr(T0)}, {vr(Qt)}, {vr(Qt)}, {vr(T0)}")
        a(f"v_dot2_f32_bf16 {vr(T1)}, {vr(Qt+1)}, {vr(Qt+1)}, {vr(T1)}")
        regs = [Qm, Qm+1, Qm+2, Qm+3, Qt, Qt+1]
        for i, r in enumerate(regs):
            a(f"v_lshlrev_b32 {vr(SU+2*i)}, 16, {vr(r)}")
            a(f"v_and_b32 {vr(SU+2*i+1)}, 0xffff0000, {vr(r)}")
        a(f"v_add_f32 {vr(T0)}, {vr(T0)}, {vr(T1)}")
        a("s_nop 1")
        a(f"v_mov_b32 {vr(T1)}, {vr(T0)}")
        a("s_nop 1")
        a(f"v_permlane32_swap_b32 {vr(T0)}, {vr(T1)}")
        a("s_nop 1")
        a(f"v_add_f32 {vr(T0)}, {vr(T0)}, {vr(T1)}")
        a(f"v_sqrt_f32 {vr(T0)}, {vr(T0)}")
        a("s_nop 0")
        a(f"v_add_f32 {vr(T0)}, 0x358637bd, {vr(T0)}")
        a(f"v_rcp_f32 {vr(T0)}, {vr(T0)}")
        a("s_nop 0")
        a(f"v_mul_f32 {vr(T0)}, {vr(T0)}, {vr(T3)}")
        for i in range(12):
            a(f"v_mul_f32 {vr(SU+i)}, {vr(SU+i)}, {vr(T0)}")
        for i, r in enumerate(regs):
            a(f"v_cvt_pk_bf16_f32 {vr(r)}, {vr(SU+2*i)}, {vr(SU+2*i+1)}")
    a.c("fallback check: |t| > 16 -> true max pass")
    a(f"""
    s_and_b32 s3, s{S_T}, 0x7fffffff
    s_cmp_gt_u32 s3, 0x41800000
    s_cbranch_scc1 L_fallback
    """)
    a.label("L_bias_ready")
    a(f"v_or_b32 {vr(QAt)}, {vr(QAt)}, {vr(V_BIAS)}")
    a(f"v_or_b32 {vr(QBt)}, {vr(QBt)}, {vr(V_BIAS)}")
    a.label("L_main_start")
    a.c("stage chunk 0 into buffer 0")
    a(f"s_mov_b32 s{S_WB}, 0")
    emit_stage_write(a)
    a(f"s_mov_b32 s{S_GOFF}, {CH*40}")
    emit_stage_loads(a)
    a.c("init accumulators")
    for i in range(16):
        a(f"v_mov_b32 {vr(OA+i)}, 0")
        a(f"v_mov_b32 {vr(OB+i)}, 0")
    for i in range(8):
        a(f"v_mov_b32 {vr(PB+i)}, 0")
        a(f"v_mov_b32 {vr(VF[1]+i)}, 0")
    a(f"""
    s_mov_b32 s{S_RB}, 0
    s_mov_b32 s{S_WB}, {BUF}
    s_mov_b32 s{S_CNT}, {NCH}
    v_mov_b32 {vr(V_KADDR)}, {vr(V_KL)}
    v_mov_b32 {vr(V_KBADDR)}, {vr(V_KBL)}
    s_waitcnt lgkmcnt(0)
    s_barrier
    """)
    k_reads(a, 0, 0)
    a("s_waitcnt lgkmcnt(0)")
    for m in qk(SA, 0, QAm, QAt):
        a(m)
    a("s_nop 7")
    a("s_nop 3")
    a(".p2align 6") if False else None
    ts(a, 1)
    a.label("L_loop")
    a(f"v_add_u32 {vr(V_VADDR)}, s{S_RB}, {vr(V_VL)}")
    a(f"""
    s_add_u32 s{S_RN}, s{S_RB}, {BUF}
    s_cmp_eq_u32 s{S_RN}, {BUF*NBUF}
    s_cselect_b32 s{S_RN}, 0, s{S_RN}
    """)
    for kt in range(8):
        kb, vb = kt % 2, kt % 2
        if kt == 7:
            a(f"v_add_u32 {vr(V_KADDR)}, s{S_RN}, {vr(V_KL)}")
            a(f"v_add_u32 {vr(V_KBADDR)}, s{S_RN}, {vr(V_KBL)}")
        k_reads(a, (kt+1) % 2, (kt+1) % 8)
        v_reads(a, vb, kt)
        if kt == 0:
            emit_stage_write(a)
        phase(a, SA, PA, qk(SB, kb, QBm, QBt) + pv(OB, (kt+1) % 2, PB))
        a("s_waitcnt lgkmcnt(0)")
        if kt == 3:
            a("s_barrier")
        if kt == 4:
            a(f"s_add_u32 s{S_GOFF}, s{S_GOFF}, {CH*40}")
            emit_stage_loads(a)
        phase(a, SB, PB, qk(SA, (kt+1) % 2, QAm, QAt) + pv(OA, vb, PA))
    a(f"""
    s_mov_b32 s{S_RB}, s{S_RN}
    s_add_u32 s{S_WB}, s{S_WB}, {BUF}
    s_cmp_eq_u32 s{S_WB}, {BUF*NBUF}
    s_cselect_b32 s{S_WB}, 0, s{S_WB}
    s_sub_u32 s{S_CNT}, s{S_CNT}, 1
    s_cmp_lg_u32 s{S_CNT}, 0
    s_cbranch_scc1 L_loop
    """)
    ts(a, 2)
    a.c("tail: PV_B(last)")
    a("s_nop 1")
    for m in pv(OB, 1, PB):
        a(m)
    a.c("epilogue")
    a(f"""
    v_and_b32 {vr(T0)}, 31, {vr(V_LANE)}
    v_lshrrev_b32 {vr(T1)}, 5, {vr(V_LANE)}
    s_lshl_b32 s3, s{S_WAVE}, 6
    v_add_u32 {vr(T2)}, s3, {vr(T0)}
    v_mul_u32_u24 {vr(T2)}, 40, {vr(T2)}
    v_lshl_add_u32 {vr(T3)}, {vr(T1)}, 3, {vr(T2)}
    v_lshl_add_u32 {vr(SU+20)}, {vr(T1)}, 24, {vr(T2)}
    v_cmp_ne_u32 vcc, 0, {vr(T1)}
    s_nop 7
    s_nop 7
    """)
    for ti, O in enumerate((OA, OB)):
        a(f"v_rcp_f32 {vr(T0)}, {vr(O+12)}")
        a("s_nop 0")
        for i in range(12):
            a(f"v_mul_f32 {vr(SU+i)}, {vr(O+i)}, {vr(T0)}")
        for i in range(6):
            a(f"v_cvt_pk_bf16_f32 {vr(ST+i)}, {vr(SU+2*i)}, {vr(SU+2*i+1)}")
        o = ti*32*40
        a(f"buffer_store_dwordx2 {vr(ST,2)}, {vr(T3)}, s[{SRD_O}:{SRD_O+3}], 0 offen offset:{o}")
        a(f"buffer_store_dwordx2 {vr(ST+2,2)}, {vr(T3)}, s[{SRD_O}:{SRD_O+3}], 0 offen offset:{o+16}")
        a(f"buffer_store_dwordx2 {vr(ST+4,2)}, {vr(SU+20)}, s[{SRD_O}:{SRD_O+3}], 0 offen offset:{o+32}")
        a("s_nop 1")
    if DBG:
        a(f"""
        s_waitcnt vmcnt(0)
        s_memtime s[66:67]
        s_memrealtime s[72:73]
        s_waitcnt lgkmcnt(0)
        s_cmp_lg_u32 s{S_WAVE}, 0
        s_cbranch_scc1 L_end
        s_cmp_ge_u32 s2, 8
        s_cbranch_scc1 L_end
        s_lshl_b32 s3, s2, 5
        v_mov_b32 v0, s3
        v_mov_b32 v2, s60
        v_mov_b32 v3, s62
        v_mov_b32 v4, s64
        v_mov_b32 v5, s66
        v_mov_b32 v6, s70
        v_mov_b32 v7, s72
        v_mov_b32 v8, 0
        v_mov_b32 v9, 0
        s_mov_b64 exec, 1
        global_store_dwordx4 v0, v[2:5], s[58:59]
        global_store_dwordx4 v0, v[6:9], s[58:59] offset:16
        """)
    a.label("L_end")
    a("s_endpgm")
    a.label("L_fallback")
    a(f"""
    s_waitcnt vmcnt(0)
    v_mov_b32 {vr(OA)}, 0xff800000
    v_mov_b32 {vr(OB)}, 0xff800000
    s_mov_b32 s{S_GOFF}, 0
    s_mov_b32 s{S_WB}, 0
    s_mov_b32 s{S_CNT}, {NCH}
    """)
    a.label("L_fb_chunk")
    emit_stage_loads(a)
    emit_stage_write(a)
    a(f"""
    s_waitcnt lgkmcnt(0)
    s_barrier
    v_mov_b32 {vr(V_KADDR)}, {vr(V_KL)}
    v_mov_b32 {vr(V_KBADDR)}, {vr(V_KBL)}
    s_mov_b32 s3, 8
    """)
    a.label("L_fb_tile")
    k_reads(a, 0, 0)
    a("s_waitcnt lgkmcnt(0)")
    for m in qk(SA, 0, QAm, QAt) + qk(SB, 0, QBm, QBt):
        a(m)
    a("s_nop 7\ns_nop 7")
    for S, O in ((SA, OA), (SB, OB)):
        for i in range(0, 16, 2):
            a(f"v_max3_f32 {vr(O)}, {vr(S+i)}, {vr(S+i+1)}, {vr(O)}")
    a(f"""
    v_add_u32 {vr(V_KADDR)}, 512, {vr(V_KADDR)}
    v_add_u32 {vr(V_KBADDR)}, 256, {vr(V_KBADDR)}
    s_sub_u32 s3, s3, 1
    s_cmp_lg_u32 s3, 0
    s_cbranch_scc1 L_fb_tile
    s_barrier
    s_add_u32 s{S_GOFF}, s{S_GOFF}, {CH*40}
    s_sub_u32 s{S_CNT}, s{S_CNT}, 1
    s_cmp_lg_u32 s{S_CNT}, 0
    s_cbranch_scc1 L_fb_chunk
    v_lshrrev_b32 {vr(T3)}, 5, {vr(V_LANE)}
    v_cmp_ne_u32 vcc, 0, {vr(T3)}
    """)
    for O, Qt in ((OA, QAt), (OB, QBt)):
        a(f"""
        v_mov_b32 {vr(T1)}, {vr(O)}
        s_nop 1
        v_permlane32_swap_b32 {vr(O)}, {vr(T1)}
        s_nop 1
        v_max_f32 {vr(T0)}, {vr(O)}, {vr(T1)}
        v_sub_f32 {vr(T0)}, 0, {vr(T0)}
        v_cvt_pk_bf16_f32 {vr(T1)}, {vr(T0)}, 0
        v_lshlrev_b32 {vr(T2)}, 16, {vr(T1)}
        v_sub_f32 {vr(T2)}, {vr(T0)}, {vr(T2)}
        v_cvt_pk_bf16_f32 {vr(T1)}, {vr(T0)}, {vr(T2)}
        v_cndmask_b32 {vr(T1)}, 0, {vr(T1)}, vcc
        v_or_b32 {vr(Qt)}, {vr(Qt)}, {vr(T1)}
        """)
    a(f"s_mov_b32 s{S_GOFF}, 0")
    emit_stage_loads(a)
    a("s_branch L_main_start")
    ftr = f"""
.section .rodata,"a"
.p2align 6
.amdhsa_kernel {name}
  .amdhsa_next_free_vgpr {NV}
  .amdhsa_next_free_sgpr 102
  .amdhsa_accum_offset {NV}
  .amdhsa_group_segment_fixed_size 0
  .amdhsa_kernarg_size 56
  .amdhsa_user_sgpr_count 2
  .amdhsa_user_sgpr_kernarg_segment_ptr 1
  .amdhsa_system_sgpr_workgroup_id_x 1
.end_amdhsa_kernel
"""
    return hdr + a.text() + ftr

if __name__ == "__main__":
    av = [x for x in sys.argv[1:] if not x.startswith("--")]
    out = av[0] if av else "standalone__qk_norm__prompt.s"
    open(out, "w").write(gen())
```

```python
import sys

class Asm:
    def __init__(self):
        self.l = []
    def __call__(self, s):
        for x in s.strip("\n").split("\n"):
            x = x.strip()
            if x:
                self.l.append("  " + x)
    def label(self, s):
        self.l.append(s + ":")
    def c(self, s):
        self.l.append("  ; " + s)
    def text(self):
        return "\n".join(self.l) + "\n"

def vr(a, n=1):
    return f"v{a}" if n == 1 else f"v[{a}:{a+n-1}]"

CH = 256
NCH = 2048 // CH
KA0, KA1, KB0, KB1, VOFF = 0, 4096, 8192, 10240, 12288
BUF = 24576
NBUF = 3
LDS = BUF * NBUF
HEADB = 2048 * 40
V_TID, V_LANE = 0, 1
V_KADDR, V_KBADDR, V_VADDR = 2, 3, 4
V_KL, V_KBL, V_VL = 5, 6, 7
V_GOFF, V_WL, V_WL2, V_WA, V_WA2 = 8, 9, 10, 11, 12
T0, T1, T2, T3 = 14, 15, 16, 17
V_BIAS = 13
SA, SB, OA, OB = 20, 36, 52, 68
PA, PB = 84, 92
QAm, QAt, QBm, QBt = 100, 104, 106, 110
KF = [(112, 116), (118, 122)]
VF = [124, 132]
ST = 140
SU = 150
NV = 172

S_WAVE, S_ROLE, S_BH, S_QB = 32, 33, 30, 31
S_RB, S_WB, S_RN = 40, 41, 42
S_GOFF = 43
S_CNT = 44
S_T = 34
SRD_K, SRD_V, SRD_Q, SRD_O, SRD_S = 8, 12, 4, 16, 36

LOG2E = 0x3fb8aa3b

def emit_stage_compute_K(a):
    a(f"v_dot2_f32_bf16 {vr(T0)}, {vr(ST)}, {vr(ST)}, 0")
    a(f"v_dot2_f32_bf16 {vr(T1)}, {vr(ST+1)}, {vr(ST+1)}, 0")
    for i in range(2, 10, 2):
        a(f"v_dot2_f32_bf16 {vr(T0)}, {vr(ST+i)}, {vr(ST+i)}, {vr(T0)}")
        a(f"v_dot2_f32_bf16 {vr(T1)}, {vr(ST+i+1)}, {vr(ST+i+1)}, {vr(T1)}")
    for i in range(10):
        a(f"v_lshlrev_b32 {vr(SU+2*i)}, 16, {vr(ST+i)}")
        a(f"v_and_b32 {vr(SU+2*i+1)}, 0xffff0000, {vr(ST+i)}")
    a(f"v_add_f32 {vr(T0)}, {vr(T0)}, {vr(T1)}")
    a(f"v_sqrt_f32 {vr(T0)}, {vr(T0)}")
    a("s_nop 0")
    a(f"v_add_f32 {vr(T0)}, 0x358637bd, {vr(T0)}")
    a(f"v_rcp_f32 {vr(T2)}, {vr(T0)}")
    a("s_nop 0")
    for i in range(10):
        a(f"v_pk_mul_f32 {vr(SU+2*i,2)}, {vr(SU+2*i,2)}, {vr(T2,2)} op_sel_hi:[1,0]")
    for i in range(10):
        a(f"v_cvt_pk_bf16_f32 {vr(ST+i)}, {vr(SU+2*i)}, {vr(SU+2*i+1)}")
    a(f"ds_write_b128 {vr(V_WA)}, {vr(ST,4)} offset:{KA0}")
    a(f"ds_write_b128 {vr(V_WA)}, {vr(ST+4,4)} offset:{KA1}")
    a(f"ds_write_b64 {vr(V_WA2)}, {vr(ST+8,2)} offset:{KB0}")

def emit_stage_compute_V(a):
    a(f"ds_write_b128 {vr(V_WA)}, {vr(ST,4)} offset:{VOFF}")
    a(f"ds_write_b128 {vr(V_WA)}, {vr(ST+4,4)} offset:{VOFF+16}")
    a(f"ds_write_b64 {vr(V_WA)}, {vr(ST+8,2)} offset:{VOFF+32}")

def emit_stage_loads(a):
    a(f"buffer_load_dwordx4 {vr(ST,4)}, {vr(V_GOFF)}, s[{SRD_S}:{SRD_S+3}], s{S_GOFF} offen")
    a(f"buffer_load_dwordx4 {vr(ST+4,4)}, {vr(V_GOFF)}, s[{SRD_S}:{SRD_S+3}], s{S_GOFF} offen offset:16")
    a(f"buffer_load_dwordx2 {vr(ST+8,2)}, {vr(V_GOFF)}, s[{SRD_S}:{SRD_S+3}], s{S_GOFF} offen offset:32")

uid = [0]
def emit_stage_write(a):
    uid[0] += 1
    u = uid[0]
    a(f"v_add_u32 {vr(V_WA)}, s{S_WB}, {vr(V_WL)}")
    a(f"v_add_u32 {vr(V_WA2)}, s{S_WB}, {vr(V_WL2)}")
    a("s_waitcnt vmcnt(0)")
    a(f"s_cmp_lg_u32 s{S_ROLE}, 0")
    a(f"s_cbranch_scc1 L_stV{u}")
    emit_stage_compute_K(a)
    a(f"s_branch L_stE{u}")
    a.label(f"L_stV{u}")
    emit_stage_compute_V(a)
    a.label(f"L_stE{u}")

def k_reads(a, buf, tile):
    m, t = KF[buf]
    a(f"ds_read_b128 {vr(m,4)}, {vr(V_KADDR)} offset:{tile*512}")
    a(f"ds_read_b64 {vr(t,2)}, {vr(V_KBADDR)} offset:{tile*256}")

def v_reads(a, buf, tile):
    for j in range(2):
        for half in range(2):
            off = (tile*32 + 16*j + 4*half) * 48
            a(f"ds_read_b64_tr_b16 {vr(VF[buf] + 4*j + 2*half, 2)}, {vr(V_VADDR)} offset:{off}")

def qk(S, kbuf, Qm, Qt):
    m, t = KF[kbuf]
    return [f"v_mfma_f32_32x32x8_bf16 {vr(S,16)}, {vr(t,2)}, {vr(Qt,2)}, 0",
            f"v_mfma_f32_32x32x16_bf16 {vr(S,16)}, {vr(m,4)}, {vr(Qm,4)}, {vr(S,16)}"]

def pv(O, vbuf, P):
    return [f"v_mfma_f32_32x32x16_bf16 {vr(O,16)}, {vr(VF[vbuf]+4*j,4)}, {vr(P+4*j,4)}, {vr(O,16)}" for j in range(2)]

def phase(a, S, P, mfmas):
    for g in range(4):
        a(mfmas[g])
        for i in range(4*g, 4*g+4):
            a(f"v_exp_f32 {vr(S+i)}, {vr(S+i)}")
        a(f"v_cvt_pk_bf16_f32 {vr(P+2*g)}, {vr(S+4*g)}, {vr(S+4*g+1)}")
        a(f"v_cvt_pk_bf16_f32 {vr(P+2*g+1)}, {vr(S+4*g+2)}, {vr(S+4*g+3)}")

DBG = "--dbg" in sys.argv
X_NOSTAGE = "--nostage" in sys.argv
X_NOLDS = "--nolds" in sys.argv
X_NOBAR = "--nobar" in sys.argv
X_NOK = "--nok" in sys.argv
X_NOV = "--nov" in sys.argv
DBG2 = "--dbg2" in sys.argv
DBG = DBG or DBG2
def ts(a, i):
    if DBG:
        a(f"s_memtime s[{60+2*i}:{61+2*i}]")
    if DBG2:
        a(f"s_memrealtime s[{74+2*i}:{75+2*i}]")

def gen():
    a = Asm()
    dbg_head = "s_memtime s[60:61]\ns_memrealtime s[70:71]\ns_load_dwordx2 s[58:59], s[0:1], " + ("48" if DBG2 else "40") if DBG else ""
    name = "standalone__qk_norm__prompt_kernel"
    hdr = f"""; qk-norm attention, hand-written generator (gen/gen1.py)
; @launch grid=(256,1,1) block=(512,1,1) lds={LDS}
.amdgcn_target "amdgcn-amd-amdhsa--gfx950"
.text
.globl {name}
.p2align 8
.type {name},@function
{name}:
"""
    a(f"""
    s_cmp_ge_u32 s2, 256
    s_cbranch_scc1 L_end
    {dbg_head}
    s_load_dwordx4 s[20:23], s[0:1], 0
    s_load_dwordx4 s[24:27], s[0:1], 16
    s_load_dwordx2 s[28:29], s[0:1], 32
    s_and_b32 s{S_BH}, s2, 7
    s_lshr_b32 s3, s2, 5
    s_lshl_b32 s3, s3, 3
    s_add_u32 s{S_BH}, s{S_BH}, s3
    s_lshr_b32 s{S_QB}, s2, 3
    s_and_b32 s{S_QB}, s{S_QB}, 3
    v_and_b32 {vr(V_LANE)}, 63, {vr(V_TID)}
    v_lshrrev_b32 {vr(T0)}, 6, {vr(V_TID)}
    s_mul_i32 s35, s{S_BH}, {HEADB}
    v_readfirstlane_b32 s{S_WAVE}, {vr(T0)}
    s_mul_i32 s45, s{S_QB}, {512*40}
    s_add_u32 s45, s45, s35
    s_and_b32 s46, s{S_BH}, 31
    s_lshl_b32 s46, s46, 1
    s_and_b32 s47, s46, 0x7c
    s_lshr_b32 s{S_ROLE}, s{S_WAVE}, 2
    s_waitcnt lgkmcnt(0)
    s_load_dword s{S_T}, s[26:27], s47
    s_add_u32 s{SRD_K}, s22, s35
    s_addc_u32 s{SRD_K+1}, s23, 0
    s_mov_b32 s{SRD_K+2}, {HEADB}
    s_mov_b32 s{SRD_K+3}, 0x00020000
    s_add_u32 s{SRD_V}, s24, s35
    s_addc_u32 s{SRD_V+1}, s25, 0
    s_mov_b32 s{SRD_V+2}, {HEADB}
    s_mov_b32 s{SRD_V+3}, 0x00020000
    s_add_u32 s{SRD_Q}, s20, s45
    s_addc_u32 s{SRD_Q+1}, s21, 0
    s_mov_b32 s{SRD_Q+2}, {512*40}
    s_mov_b32 s{SRD_Q+3}, 0x00020000
    s_add_u32 s{SRD_O}, s28, s45
    s_addc_u32 s{SRD_O+1}, s29, 0
    s_mov_b32 s{SRD_O+2}, {512*40}
    s_mov_b32 s{SRD_O+3}, 0x00020000
    s_cmp_eq_u32 s{S_ROLE}, 0
    s_cselect_b32 s{SRD_S}, s{SRD_K}, s{SRD_V}
    s_cselect_b32 s{SRD_S+1}, s{SRD_K+1}, s{SRD_V+1}
    s_mov_b32 s{SRD_S+2}, {HEADB}
    s_mov_b32 s{SRD_S+3}, 0x00020000
    """)
    a.c("lane decomposition")
    a(f"""
    v_and_b32 {vr(T0)}, 31, {vr(V_LANE)}
    v_lshrrev_b32 {vr(T1)}, 5, {vr(V_LANE)}
    """)
    a.c("Q loads: voffset = (wave*64 + n)*40 + 16h ; tail: h==0 ? row*40+32 : OOB")
    a(f"""
    s_lshl_b32 s3, s{S_WAVE}, 6
    v_add_u32 {vr(T2)}, s3, {vr(T0)}
    v_mul_u32_u24 {vr(T2)}, 40, {vr(T2)}
    v_lshl_add_u32 {vr(T3)}, {vr(T1)}, 4, {vr(T2)}
    v_lshl_add_u32 {vr(SU)}, {vr(T1)}, 24, {vr(T2)}
    buffer_load_dwordx4 {vr(QAm,4)}, {vr(T3)}, s[{SRD_Q}:{SRD_Q+3}], 0 offen
    buffer_load_dwordx2 {vr(QAt,2)}, {vr(SU)}, s[{SRD_Q}:{SRD_Q+3}], 0 offen offset:32
    buffer_load_dwordx4 {vr(QBm,4)}, {vr(T3)}, s[{SRD_Q}:{SRD_Q+3}], 0 offen offset:{32*40}
    buffer_load_dwordx2 {vr(QBt,2)}, {vr(SU)}, s[{SRD_Q}:{SRD_Q+3}], 0 offen offset:{32*40+32}
    """)
    a.c("staging addresses")
    a(f"""
    v_and_b32 {vr(T2)}, 255, {vr(V_TID)}
    v_mul_u32_u24 {vr(V_GOFF)}, 40, {vr(T2)}
    s_mov_b32 s{S_GOFF}, 0
    """)
    emit_stage_loads(a)
    a(f"""
    s_cmp_eq_u32 s{S_ROLE}, 0
    s_cselect_b32 s3, 16, 48
    v_mul_u32_u24 {vr(V_WL)}, s3, {vr(T2)}
    v_lshlrev_b32 {vr(V_WL2)}, 3, {vr(T2)}
    """)
    a.c("LDS constants: K role writes KB1 plane [1,1,0,0]; V role writes ones chunk [1,0,0,0] at +40")
    a(f"""
    s_mov_b32 s49, 0x3f803f80
    s_mov_b32 s48, 0x00003f80
    s_cselect_b32 s3, s49, s48
    v_mov_b32 {vr(SU+2)}, s3
    v_mov_b32 {vr(SU+3)}, 0
    s_mov_b32 s48, {KB1}
    s_mov_b32 s49, {VOFF+40}
    s_cselect_b32 s3, s48, s49
    v_mov_b32 {vr(SU+4)}, s3
    v_add_u32 {vr(SU+5)}, {vr(SU+4)}, {vr(V_WL)}
    v_add_u32 {vr(SU+4)}, {vr(SU+4)}, {vr(V_WL2)}
    s_cselect_b64 vcc, -1, 0
    v_cndmask_b32 {vr(SU+4)}, {vr(SU+5)}, {vr(SU+4)}, vcc
    """)
    for b in range(NBUF):
        a(f"ds_write_b64 {vr(SU+4)}, {vr(SU+2,2)} offset:{b*BUF}")
    a.c("read lane parts")
    a(f"""
    v_and_b32 {vr(T2)}, 0x13, {vr(T0)}
    v_and_b32 {vr(T3)}, 4, {vr(T0)}
    v_lshl_or_b32 {vr(T2)}, {vr(T3)}, 1, {vr(T2)}
    v_and_b32 {vr(T3)}, 8, {vr(T0)}
    v_lshrrev_b32 {vr(T3)}, 1, {vr(T3)}
    v_or_b32 {vr(T2)}, {vr(T2)}, {vr(T3)}
    v_lshlrev_b32 {vr(V_KL)}, 4, {vr(T2)}
    v_lshl_add_u32 {vr(V_KL)}, {vr(T1)}, 12, {vr(V_KL)}
    v_lshlrev_b32 {vr(V_KBL)}, 3, {vr(T2)}
    v_lshl_add_u32 {vr(V_KBL)}, {vr(T1)}, 11, {vr(V_KBL)}
    v_add_u32 {vr(V_KBL)}, {KB0}, {vr(V_KBL)}
    """)
    a(f"""
    v_bfe_u32 {vr(T2)}, {vr(V_LANE)}, 2, 2
    v_lshl_add_u32 {vr(T2)}, {vr(T1)}, 3, {vr(T2)}
    v_mul_u32_u24 {vr(V_VL)}, 48, {vr(T2)}
    v_and_b32 {vr(T2)}, 3, {vr(V_LANE)}
    v_min_u32 {vr(T3)}, 1, {vr(T2)}
    v_add_u32 {vr(T3)}, 4, {vr(T3)}
    v_and_b32 {vr(SU)}, 16, {vr(V_LANE)}
    v_cmp_ne_u32 vcc, 0, {vr(SU)}
    s_nop 1
    v_cndmask_b32 {vr(T2)}, {vr(T2)}, {vr(T3)}, vcc
    v_lshl_add_u32 {vr(V_VL)}, {vr(T2)}, 3, {vr(V_VL)}
    v_add_u32 {vr(V_VL)}, {VOFF}, {vr(V_VL)}
    """)
    a.c("t -> scale")
    a(f"""
    s_waitcnt lgkmcnt(0)
    s_and_b32 s46, s46, 2
    s_lshl_b32 s46, s46, 3
    s_lshr_b32 s{S_T}, s{S_T}, s46
    s_lshl_b32 s{S_T}, s{S_T}, 16
    v_mov_b32 {vr(T3)}, s{S_T}
    v_mul_f32 {vr(T3)}, 0x{LOG2E:08x}, {vr(T3)}
    """)
    a(f"""
    v_or_b32 {vr(V_BIAS)}, 0x80000000, {vr(T3)}
    v_cvt_pk_bf16_f32 {vr(V_BIAS)}, {vr(V_BIAS)}, 0
    v_cmp_ne_u32 vcc, 0, {vr(T1)}
    s_nop 1
    v_cndmask_b32 {vr(V_BIAS)}, 0, {vr(V_BIAS)}, vcc
    """)
    a.c("Q normalisation")
    a("s_waitcnt vmcnt(3)")
    for (Qm, Qt) in ((QAm, QAt), (QBm, QBt)):
        a(f"v_dot2_f32_bf16 {vr(T0)}, {vr(Qm)}, {vr(Qm)}, 0")
        a(f"v_dot2_f32_bf16 {vr(T1)}, {vr(Qm+1)}, {vr(Qm+1)}, 0")
        a(f"v_dot2_f32_bf16 {vr(T0)}, {vr(Qm+2)}, {vr(Qm+2)}, {vr(T0)}")
        a(f"v_dot2_f32_bf16 {vr(T1)}, {vr(Qm+3)}, {vr(Qm+3)}, {vr(T1)}")
        a(f"v_dot2_f32_bf16 {vr(T0)}, {vr(Qt)}, {vr(Qt)}, {vr(T0)}")
        a(f"v_dot2_f32_bf16 {vr(T1)}, {vr(Qt+1)}, {vr(Qt+1)}, {vr(T1)}")
        regs = [Qm, Qm+1, Qm+2, Qm+3, Qt, Qt+1]
        for i, r in enumerate(regs):
            a(f"v_lshlrev_b32 {vr(SU+2*i)}, 16, {vr(r)}")
            a(f"v_and_b32 {vr(SU+2*i+1)}, 0xffff0000, {vr(r)}")
        a(f"v_add_f32 {vr(T0)}, {vr(T0)}, {vr(T1)}")
        a("s_nop 1")
        a(f"v_mov_b32 {vr(T1)}, {vr(T0)}")
        a("s_nop 1")
        a(f"v_permlane32_swap_b32 {vr(T0)}, {vr(T1)}")
        a("s_nop 1")
        a(f"v_add_f32 {vr(T0)}, {vr(T0)}, {vr(T1)}")
        a(f"v_sqrt_f32 {vr(T0)}, {vr(T0)}")
        a("s_nop 0")
        a(f"v_add_f32 {vr(T0)}, 0x358637bd, {vr(T0)}")
        a(f"v_rcp_f32 {vr(T0)}, {vr(T0)}")
        a("s_nop 0")
        a(f"v_mul_f32 {vr(T0)}, {vr(T0)}, {vr(T3)}")
        for i in range(12):
            a(f"v_mul_f32 {vr(SU+i)}, {vr(SU+i)}, {vr(T0)}")
        for i, r in enumerate(regs):
            a(f"v_cvt_pk_bf16_f32 {vr(r)}, {vr(SU+2*i)}, {vr(SU+2*i+1)}")
    a.c("fallback check: |t| > 16 -> true max pass")
    a(f"""
    s_and_b32 s3, s{S_T}, 0x7fffffff
    s_cmp_gt_u32 s3, 0x41800000
    s_cbranch_scc1 L_fallback
    """)
    a.label("L_bias_ready")
    a(f"v_or_b32 {vr(QAt)}, {vr(QAt)}, {vr(V_BIAS)}")
    a(f"v_or_b32 {vr(QBt)}, {vr(QBt)}, {vr(V_BIAS)}")
    a.label("L_main_start")
    a.c("stage chunk 0 into buffer 0")
    a(f"s_mov_b32 s{S_WB}, 0")
    emit_stage_write(a)
    a(f"s_mov_b32 s{S_GOFF}, {CH*40}")
    emit_stage_loads(a)
    a.c("init accumulators")
    for i in range(16):
        a(f"v_mov_b32 {vr(OA+i)}, 0")
        a(f"v_mov_b32 {vr(OB+i)}, 0")
    for i in range(8):
        a(f"v_mov_b32 {vr(PB+i)}, 0")
        a(f"v_mov_b32 {vr(VF[1]+i)}, 0")
    a(f"""
    s_mov_b32 s{S_RB}, 0
    s_mov_b32 s{S_WB}, {BUF}
    s_mov_b32 s{S_CNT}, {NCH}
    v_mov_b32 {vr(V_KADDR)}, {vr(V_KL)}
    v_mov_b32 {vr(V_KBADDR)}, {vr(V_KBL)}
    s_waitcnt lgkmcnt(0)
    s_barrier
    """)
    k_reads(a, 0, 0)
    a("s_waitcnt lgkmcnt(0)")
    for m in qk(SA, 0, QAm, QAt):
        a(m)
    a("s_nop 7")
    a("s_nop 3")
    a(".p2align 6") if False else None
    ts(a, 1)
    a.label("L_loop")
    a(f"v_add_u32 {vr(V_VADDR)}, s{S_RB}, {vr(V_VL)}")
    a(f"""
    s_add_u32 s{S_RN}, s{S_RB}, {BUF}
    s_cmp_eq_u32 s{S_RN}, {BUF*NBUF}
    s_cselect_b32 s{S_RN}, 0, s{S_RN}
    """)
    for kt in range(8):
        kb, vb = kt % 2, kt % 2
        if kt == 7:
            a(f"v_add_u32 {vr(V_KADDR)}, s{S_RN}, {vr(V_KL)}")
            a(f"v_add_u32 {vr(V_KBADDR)}, s{S_RN}, {vr(V_KBL)}")
        if not (X_NOLDS or X_NOK): k_reads(a, (kt+1) % 2, (kt+1) % 8)
        if not (X_NOLDS or X_NOV): v_reads(a, vb, kt)
        if kt == 0 and not X_NOSTAGE:
            emit_stage_write(a)
        phase(a, SA, PA, qk(SB, kb, QBm, QBt) + pv(OB, (kt+1) % 2, PB))
        a("s_waitcnt lgkmcnt(0)")
        if kt == 3 and not X_NOBAR:
            a("s_barrier")
        if kt == 4 and not X_NOSTAGE:
            a(f"s_add_u32 s{S_GOFF}, s{S_GOFF}, {CH*40}")
            emit_stage_loads(a)
        phase(a, SB, PB, qk(SA, (kt+1) % 2, QAm, QAt) + pv(OA, vb, PA))
    a(f"""
    s_mov_b32 s{S_RB}, s{S_RN}
    s_add_u32 s{S_WB}, s{S_WB}, {BUF}
    s_cmp_eq_u32 s{S_WB}, {BUF*NBUF}
    s_cselect_b32 s{S_WB}, 0, s{S_WB}
    s_sub_u32 s{S_CNT}, s{S_CNT}, 1
    s_cmp_lg_u32 s{S_CNT}, 0
    s_cbranch_scc1 L_loop
    """)
    ts(a, 2)
    a.c("tail: PV_B(last)")
    a("s_nop 1")
    for m in pv(OB, 1, PB):
        a(m)
    a.c("epilogue")
    a(f"""
    v_and_b32 {vr(T0)}, 31, {vr(V_LANE)}
    v_lshrrev_b32 {vr(T1)}, 5, {vr(V_LANE)}
    s_lshl_b32 s3, s{S_WAVE}, 6
    v_add_u32 {vr(T2)}, s3, {vr(T0)}
    v_mul_u32_u24 {vr(T2)}, 40, {vr(T2)}
    v_lshl_add_u32 {vr(T3)}, {vr(T1)}, 3, {vr(T2)}
    v_lshl_add_u32 {vr(SU+20)}, {vr(T1)}, 24, {vr(T2)}
    v_cmp_ne_u32 vcc, 0, {vr(T1)}
    s_nop 7
    s_nop 7
    """)
    for ti, O in enumerate((OA, OB)):
        a(f"v_rcp_f32 {vr(T0)}, {vr(O+12)}")
        a("s_nop 0")
        for i in range(12):
            a(f"v_mul_f32 {vr(SU+i)}, {vr(O+i)}, {vr(T0)}")
        for i in range(6):
            a(f"v_cvt_pk_bf16_f32 {vr(ST+i)}, {vr(SU+2*i)}, {vr(SU+2*i+1)}")
        o = ti*32*40
        a(f"buffer_store_dwordx2 {vr(ST,2)}, {vr(T3)}, s[{SRD_O}:{SRD_O+3}], 0 offen offset:{o}")
        a(f"buffer_store_dwordx2 {vr(ST+2,2)}, {vr(T3)}, s[{SRD_O}:{SRD_O+3}], 0 offen offset:{o+16}")
        a(f"buffer_store_dwordx2 {vr(ST+4,2)}, {vr(SU+20)}, s[{SRD_O}:{SRD_O+3}], 0 offen offset:{o+32}")
        a("s_nop 1")
    if DBG:
        a(f"""
        s_waitcnt vmcnt(0)
        s_memtime s[66:67]
        s_memrealtime s[72:73]
        s_waitcnt lgkmcnt(0)
        s_cmp_lg_u32 s{S_WAVE}, 0
        s_cbranch_scc1 L_end
        s_cmp_ge_u32 s2, {256 if DBG2 else 8}
        s_cbranch_scc1 L_end
        s_lshl_b32 s3, s2, 5
        v_mov_b32 v0, s3
        v_mov_b32 v2, s60
        v_mov_b32 v3, s62
        v_mov_b32 v4, s64
        v_mov_b32 v5, s66
        v_mov_b32 v6, s70
        v_mov_b32 v7, s72
        v_mov_b32 v8, {"s76" if DBG2 else 0}
        v_mov_b32 v9, {"s78" if DBG2 else 0}
        s_mov_b64 exec, 1
        global_store_dwordx4 v0, v[2:5], s[58:59]
        global_store_dwordx4 v0, v[6:9], s[58:59] offset:16
        """)
    a.label("L_end")
    a("s_endpgm")
    a.label("L_fallback")
    a(f"""
    s_waitcnt vmcnt(0)
    v_mov_b32 {vr(OA)}, 0xff800000
    v_mov_b32 {vr(OB)}, 0xff800000
    s_mov_b32 s{S_GOFF}, 0
    s_mov_b32 s{S_WB}, 0
    s_mov_b32 s{S_CNT}, {NCH}
    """)
    a.label("L_fb_chunk")
    emit_stage_loads(a)
    emit_stage_write(a)
    a(f"""
    s_waitcnt lgkmcnt(0)
    s_barrier
    v_mov_b32 {vr(V_KADDR)}, {vr(V_KL)}
    v_mov_b32 {vr(V_KBADDR)}, {vr(V_KBL)}
    s_mov_b32 s3, 8
    """)
    a.label("L_fb_tile")
    k_reads(a, 0, 0)
    a("s_waitcnt lgkmcnt(0)")
    for m in qk(SA, 0, QAm, QAt) + qk(SB, 0, QBm, QBt):
        a(m)
    a("s_nop 7\ns_nop 7")
    for S, O in ((SA, OA), (SB, OB)):
        for i in range(0, 16, 2):
            a(f"v_max3_f32 {vr(O)}, {vr(S+i)}, {vr(S+i+1)}, {vr(O)}")
    a(f"""
    v_add_u32 {vr(V_KADDR)}, 512, {vr(V_KADDR)}
    v_add_u32 {vr(V_KBADDR)}, 256, {vr(V_KBADDR)}
    s_sub_u32 s3, s3, 1
    s_cmp_lg_u32 s3, 0
    s_cbranch_scc1 L_fb_tile
    s_barrier
    s_add_u32 s{S_GOFF}, s{S_GOFF}, {CH*40}
    s_sub_u32 s{S_CNT}, s{S_CNT}, 1
    s_cmp_lg_u32 s{S_CNT}, 0
    s_cbranch_scc1 L_fb_chunk
    v_lshrrev_b32 {vr(T3)}, 5, {vr(V_LANE)}
    v_cmp_ne_u32 vcc, 0, {vr(T3)}
    """)
    for O, Qt in ((OA, QAt), (OB, QBt)):
        a(f"""
        v_mov_b32 {vr(T1)}, {vr(O)}
        s_nop 1
        v_permlane32_swap_b32 {vr(O)}, {vr(T1)}
        s_nop 1
        v_max_f32 {vr(T0)}, {vr(O)}, {vr(T1)}
        v_sub_f32 {vr(T0)}, 0, {vr(T0)}
        v_cvt_pk_bf16_f32 {vr(T1)}, {vr(T0)}, 0
        v_lshlrev_b32 {vr(T2)}, 16, {vr(T1)}
        v_sub_f32 {vr(T2)}, {vr(T0)}, {vr(T2)}
        v_cvt_pk_bf16_f32 {vr(T1)}, {vr(T0)}, {vr(T2)}
        v_cndmask_b32 {vr(T1)}, 0, {vr(T1)}, vcc
        v_or_b32 {vr(Qt)}, {vr(Qt)}, {vr(T1)}
        """)
    a(f"s_mov_b32 s{S_GOFF}, 0")
    emit_stage_loads(a)
    a("s_branch L_main_start")
    ftr = f"""
.section .rodata,"a"
.p2align 6
.amdhsa_kernel {name}
  .amdhsa_next_free_vgpr {NV}
  .amdhsa_next_free_sgpr 102
  .amdhsa_accum_offset {NV}
  .amdhsa_group_segment_fixed_size 0
  .amdhsa_kernarg_size 56
  .amdhsa_user_sgpr_count 2
  .amdhsa_user_sgpr_kernarg_segment_ptr 1
  .amdhsa_system_sgpr_workgroup_id_x 1
.end_amdhsa_kernel
"""
    return hdr + a.text() + ftr

if __name__ == "__main__":
    av = [x for x in sys.argv[1:] if not x.startswith("--")]
    out = av[0] if av else "standalone__qk_norm__prompt.s"
    open(out, "w").write(gen())
```

```python
import sys

class Asm:
    def __init__(self):
        self.l = []
    def __call__(self, s):
        for x in s.strip("\n").split("\n"):
            x = x.strip()
            if x:
                self.l.append("  " + x)
    def label(self, s):
        self.l.append(s + ":")
    def c(self, s):
        self.l.append("  ; " + s)
    def text(self):
        return "\n".join(self.l) + "\n"

def vr(a, n=1):
    return f"v{a}" if n == 1 else f"v[{a}:{a+n-1}]"

CH = 256
NCH = 2048 // CH
KA0, KA1, KB0, KB1, VOFF = 0, 4096, 8192, 10240, 12288
BUF = 24576
NBUF = 3
LDS = BUF * NBUF
HEADB = 2048 * 40
V_TID, V_LANE = 0, 1
V_KADDR, V_KBADDR, V_VADDR = 2, 3, 4
V_KL, V_KBL, V_VL = 5, 6, 7
V_GOFF, V_WL, V_WL2, V_WA, V_WA2 = 8, 9, 10, 11, 12
T0, T1, T2, T3 = 14, 15, 16, 17
V_BIAS = 13
SA, SB, OA, OB = 20, 36, 52, 68
PA, PB = 84, 92
QAm, QAt, QBm, QBt = 100, 104, 106, 110
KF = [(112, 116), (118, 122)]
VF = [124, 132]
ST = 140
SU = 150
NV = 172

S_WAVE, S_ROLE, S_BH, S_QB = 32, 33, 30, 31
S_RB, S_WB, S_RN = 40, 41, 42
S_GOFF = 43
S_CNT = 44
S_T = 34
SRD_K, SRD_V, SRD_Q, SRD_O, SRD_S = 8, 12, 4, 16, 36

LOG2E = 0x3fb8aa3b

def emit_stage_compute_K(a):
    a(f"v_dot2_f32_bf16 {vr(T0)}, {vr(ST)}, {vr(ST)}, 0")
    a(f"v_dot2_f32_bf16 {vr(T1)}, {vr(ST+1)}, {vr(ST+1)}, 0")
    for i in range(2, 10, 2):
        a(f"v_dot2_f32_bf16 {vr(T0)}, {vr(ST+i)}, {vr(ST+i)}, {vr(T0)}")
        a(f"v_dot2_f32_bf16 {vr(T1)}, {vr(ST+i+1)}, {vr(ST+i+1)}, {vr(T1)}")
    for i in range(10):
        a(f"v_lshlrev_b32 {vr(SU+2*i)}, 16, {vr(ST+i)}")
        a(f"v_and_b32 {vr(SU+2*i+1)}, 0xffff0000, {vr(ST+i)}")
    a(f"v_add_f32 {vr(T0)}, {vr(T0)}, {vr(T1)}")
    a(f"v_sqrt_f32 {vr(T0)}, {vr(T0)}")
    a("s_nop 0")
    a(f"v_add_f32 {vr(T0)}, 0x358637bd, {vr(T0)}")
    a(f"v_rcp_f32 {vr(T2)}, {vr(T0)}")
    a("s_nop 0")
    for i in range(10):
        a(f"v_pk_mul_f32 {vr(SU+2*i,2)}, {vr(SU+2*i,2)}, {vr(T2,2)} op_sel_hi:[1,0]")
    for i in range(10):
        a(f"v_cvt_pk_bf16_f32 {vr(ST+i)}, {vr(SU+2*i)}, {vr(SU+2*i+1)}")
    a(f"ds_write_b128 {vr(V_WA)}, {vr(ST,4)} offset:{KA0}")
    a(f"ds_write_b128 {vr(V_WA)}, {vr(ST+4,4)} offset:{KA1}")
    a(f"ds_write_b64 {vr(V_WA2)}, {vr(ST+8,2)} offset:{KB0}")

def emit_stage_compute_V(a):
    a(f"ds_write_b128 {vr(V_WA)}, {vr(ST,4)} offset:{VOFF}")
    a(f"ds_write_b128 {vr(V_WA)}, {vr(ST+4,4)} offset:{VOFF+16}")
    a(f"ds_write_b64 {vr(V_WA)}, {vr(ST+8,2)} offset:{VOFF+32}")

def emit_stage_loads(a):
    a(f"buffer_load_dwordx4 {vr(ST,4)}, {vr(V_GOFF)}, s[{SRD_S}:{SRD_S+3}], s{S_GOFF} offen")
    a(f"buffer_load_dwordx4 {vr(ST+4,4)}, {vr(V_GOFF)}, s[{SRD_S}:{SRD_S+3}], s{S_GOFF} offen offset:16")
    a(f"buffer_load_dwordx2 {vr(ST+8,2)}, {vr(V_GOFF)}, s[{SRD_S}:{SRD_S+3}], s{S_GOFF} offen offset:32")

uid = [0]
def emit_stage_write(a):
    uid[0] += 1
    u = uid[0]
    a(f"v_add_u32 {vr(V_WA)}, s{S_WB}, {vr(V_WL)}")
    a(f"v_add_u32 {vr(V_WA2)}, s{S_WB}, {vr(V_WL2)}")
    a("s_waitcnt vmcnt(0)")
    a(f"s_cmp_lg_u32 s{S_ROLE}, 0")
    a(f"s_cbranch_scc1 L_stV{u}")
    emit_stage_compute_K(a)
    a(f"s_branch L_stE{u}")
    a.label(f"L_stV{u}")
    emit_stage_compute_V(a)
    a.label(f"L_stE{u}")

def k_reads(a, buf, tile):
    m, t = KF[buf]
    a(f"ds_read_b128 {vr(m,4)}, {vr(V_KADDR)} offset:{tile*512}")
    a(f"ds_read_b64 {vr(t,2)}, {vr(V_KBADDR)} offset:{tile*256}")

def v_reads(a, buf, tile):
    for j in range(2):
        for half in range(2):
            off = (tile*32 + 16*j + 4*half) * 48
            a(f"ds_read_b64_tr_b16 {vr(VF[buf] + 4*j + 2*half, 2)}, {vr(V_VADDR)} offset:{off}")

def qk(S, kbuf, Qm, Qt):
    m, t = KF[kbuf]
    return [f"v_mfma_f32_32x32x8_bf16 {vr(S,16)}, {vr(t,2)}, {vr(Qt,2)}, 0",
            f"v_mfma_f32_32x32x16_bf16 {vr(S,16)}, {vr(m,4)}, {vr(Qm,4)}, {vr(S,16)}"]

def pv(O, vbuf, P):
    return [f"v_mfma_f32_32x32x16_bf16 {vr(O,16)}, {vr(VF[vbuf]+4*j,4)}, {vr(P+4*j,4)}, {vr(O,16)}" for j in range(2)]

def phase(a, S, P, mfmas):
    for g in range(4):
        a(mfmas[g])
        for i in range(4*g, 4*g+4):
            a(f"v_exp_f32 {vr(S+i)}, {vr(S+i)}")
        a(f"v_cvt_pk_bf16_f32 {vr(P+2*g)}, {vr(S+4*g)}, {vr(S+4*g+1)}")
        a(f"v_cvt_pk_bf16_f32 {vr(P+2*g+1)}, {vr(S+4*g+2)}, {vr(S+4*g+3)}")

DBG = "--dbg" in sys.argv
X_NOSTAGE = "--nostage" in sys.argv
X_NOLDS = "--nolds" in sys.argv
X_NOBAR = "--nobar" in sys.argv
X_NOK = "--nok" in sys.argv
X_NOV = "--nov" in sys.argv
DBG2 = "--dbg2" in sys.argv
XN = 1
for _x in sys.argv:
    if _x.startswith("--xn="): XN = int(_x[5:])
DBG = DBG or DBG2
def ts(a, i):
    if DBG:
        a(f"s_memtime s[{60+2*i}:{61+2*i}]")
    if DBG2:
        a(f"s_memrealtime s[{74+2*i}:{75+2*i}]")

def gen():
    a = Asm()
    dbg_head = "s_memtime s[60:61]\ns_memrealtime s[70:71]\ns_load_dwordx2 s[58:59], s[0:1], " + ("48" if DBG2 else "40") if DBG else ""
    name = "standalone__qk_norm__prompt_kernel"
    hdr = f"""; qk-norm attention, hand-written generator (gen/gen1.py)
; @launch grid=(256,1,1) block=(512,1,1) lds={LDS}
.amdgcn_target "amdgcn-amd-amdhsa--gfx950"
.text
.globl {name}
.p2align 8
.type {name},@function
{name}:
"""
    a(f"""
    s_cmp_ge_u32 s2, 256
    s_cbranch_scc1 L_end
    {dbg_head}
    s_load_dwordx4 s[20:23], s[0:1], 0
    s_load_dwordx4 s[24:27], s[0:1], 16
    s_load_dwordx2 s[28:29], s[0:1], 32
    s_and_b32 s{S_BH}, s2, 7
    s_lshr_b32 s3, s2, 5
    s_lshl_b32 s3, s3, 3
    s_add_u32 s{S_BH}, s{S_BH}, s3
    s_lshr_b32 s{S_QB}, s2, 3
    s_and_b32 s{S_QB}, s{S_QB}, 3
    v_and_b32 {vr(V_LANE)}, 63, {vr(V_TID)}
    v_lshrrev_b32 {vr(T0)}, 6, {vr(V_TID)}
    s_mul_i32 s35, s{S_BH}, {HEADB}
    v_readfirstlane_b32 s{S_WAVE}, {vr(T0)}
    s_mul_i32 s45, s{S_QB}, {512*40}
    s_add_u32 s45, s45, s35
    s_and_b32 s46, s{S_BH}, 31
    s_lshl_b32 s46, s46, 1
    s_and_b32 s47, s46, 0x7c
    s_lshr_b32 s{S_ROLE}, s{S_WAVE}, 2
    s_waitcnt lgkmcnt(0)
    s_load_dword s{S_T}, s[26:27], s47
    s_add_u32 s{SRD_K}, s22, s35
    s_addc_u32 s{SRD_K+1}, s23, 0
    s_mov_b32 s{SRD_K+2}, {HEADB}
    s_mov_b32 s{SRD_K+3}, 0x00020000
    s_add_u32 s{SRD_V}, s24, s35
    s_addc_u32 s{SRD_V+1}, s25, 0
    s_mov_b32 s{SRD_V+2}, {HEADB}
    s_mov_b32 s{SRD_V+3}, 0x00020000
    s_add_u32 s{SRD_Q}, s20, s45
    s_addc_u32 s{SRD_Q+1}, s21, 0
    s_mov_b32 s{SRD_Q+2}, {512*40}
    s_mov_b32 s{SRD_Q+3}, 0x00020000
    s_add_u32 s{SRD_O}, s28, s45
    s_addc_u32 s{SRD_O+1}, s29, 0
    s_mov_b32 s{SRD_O+2}, {512*40}
    s_mov_b32 s{SRD_O+3}, 0x00020000
    s_cmp_eq_u32 s{S_ROLE}, 0
    s_cselect_b32 s{SRD_S}, s{SRD_K}, s{SRD_V}
    s_cselect_b32 s{SRD_S+1}, s{SRD_K+1}, s{SRD_V+1}
    s_mov_b32 s{SRD_S+2}, {HEADB}
    s_mov_b32 s{SRD_S+3}, 0x00020000
    """)
    a.c("lane decomposition")
    a(f"""
    v_and_b32 {vr(T0)}, 31, {vr(V_LANE)}
    v_lshrrev_b32 {vr(T1)}, 5, {vr(V_LANE)}
    """)
    a.c("Q loads: voffset = (wave*64 + n)*40 + 16h ; tail: h==0 ? row*40+32 : OOB")
    a(f"""
    s_lshl_b32 s3, s{S_WAVE}, 6
    v_add_u32 {vr(T2)}, s3, {vr(T0)}
    v_mul_u32_u24 {vr(T2)}, 40, {vr(T2)}
    v_lshl_add_u32 {vr(T3)}, {vr(T1)}, 4, {vr(T2)}
    v_lshl_add_u32 {vr(SU)}, {vr(T1)}, 24, {vr(T2)}
    buffer_load_dwordx4 {vr(QAm,4)}, {vr(T3)}, s[{SRD_Q}:{SRD_Q+3}], 0 offen
    buffer_load_dwordx2 {vr(QAt,2)}, {vr(SU)}, s[{SRD_Q}:{SRD_Q+3}], 0 offen offset:32
    buffer_load_dwordx4 {vr(QBm,4)}, {vr(T3)}, s[{SRD_Q}:{SRD_Q+3}], 0 offen offset:{32*40}
    buffer_load_dwordx2 {vr(QBt,2)}, {vr(SU)}, s[{SRD_Q}:{SRD_Q+3}], 0 offen offset:{32*40+32}
    """)
    a.c("staging addresses")
    a(f"""
    v_and_b32 {vr(T2)}, 255, {vr(V_TID)}
    v_mul_u32_u24 {vr(V_GOFF)}, 40, {vr(T2)}
    s_mov_b32 s{S_GOFF}, 0
    """)
    emit_stage_loads(a)
    a(f"""
    s_cmp_eq_u32 s{S_ROLE}, 0
    s_cselect_b32 s3, 16, 48
    v_mul_u32_u24 {vr(V_WL)}, s3, {vr(T2)}
    v_lshlrev_b32 {vr(V_WL2)}, 3, {vr(T2)}
    """)
    a.c("LDS constants: K role writes KB1 plane [1,1,0,0]; V role writes ones chunk [1,0,0,0] at +40")
    a(f"""
    s_mov_b32 s49, 0x3f803f80
    s_mov_b32 s48, 0x00003f80
    s_cselect_b32 s3, s49, s48
    v_mov_b32 {vr(SU+2)}, s3
    v_mov_b32 {vr(SU+3)}, 0
    s_mov_b32 s48, {KB1}
    s_mov_b32 s49, {VOFF+40}
    s_cselect_b32 s3, s48, s49
    v_mov_b32 {vr(SU+4)}, s3
    v_add_u32 {vr(SU+5)}, {vr(SU+4)}, {vr(V_WL)}
    v_add_u32 {vr(SU+4)}, {vr(SU+4)}, {vr(V_WL2)}
    s_cselect_b64 vcc, -1, 0
    v_cndmask_b32 {vr(SU+4)}, {vr(SU+5)}, {vr(SU+4)}, vcc
    """)
    for b in range(NBUF):
        a(f"ds_write_b64 {vr(SU+4)}, {vr(SU+2,2)} offset:{b*BUF}")
    a.c("read lane parts")
    a(f"""
    v_and_b32 {vr(T2)}, 0x13, {vr(T0)}
    v_and_b32 {vr(T3)}, 4, {vr(T0)}
    v_lshl_or_b32 {vr(T2)}, {vr(T3)}, 1, {vr(T2)}
    v_and_b32 {vr(T3)}, 8, {vr(T0)}
    v_lshrrev_b32 {vr(T3)}, 1, {vr(T3)}
    v_or_b32 {vr(T2)}, {vr(T2)}, {vr(T3)}
    v_lshlrev_b32 {vr(V_KL)}, 4, {vr(T2)}
    v_lshl_add_u32 {vr(V_KL)}, {vr(T1)}, 12, {vr(V_KL)}
    v_lshlrev_b32 {vr(V_KBL)}, 3, {vr(T2)}
    v_lshl_add_u32 {vr(V_KBL)}, {vr(T1)}, 11, {vr(V_KBL)}
    v_add_u32 {vr(V_KBL)}, {KB0}, {vr(V_KBL)}
    """)
    a(f"""
    v_bfe_u32 {vr(T2)}, {vr(V_LANE)}, 2, 2
    v_lshl_add_u32 {vr(T2)}, {vr(T1)}, 3, {vr(T2)}
    v_mul_u32_u24 {vr(V_VL)}, 48, {vr(T2)}
    v_and_b32 {vr(T2)}, 3, {vr(V_LANE)}
    v_min_u32 {vr(T3)}, 1, {vr(T2)}
    v_add_u32 {vr(T3)}, 4, {vr(T3)}
    v_and_b32 {vr(SU)}, 16, {vr(V_LANE)}
    v_cmp_ne_u32 vcc, 0, {vr(SU)}
    s_nop 1
    v_cndmask_b32 {vr(T2)}, {vr(T2)}, {vr(T3)}, vcc
    v_lshl_add_u32 {vr(V_VL)}, {vr(T2)}, 3, {vr(V_VL)}
    v_add_u32 {vr(V_VL)}, {VOFF}, {vr(V_VL)}
    """)
    a.c("t -> scale")
    a(f"""
    s_waitcnt lgkmcnt(0)
    s_and_b32 s46, s46, 2
    s_lshl_b32 s46, s46, 3
    s_lshr_b32 s{S_T}, s{S_T}, s46
    s_lshl_b32 s{S_T}, s{S_T}, 16
    v_mov_b32 {vr(T3)}, s{S_T}
    v_mul_f32 {vr(T3)}, 0x{LOG2E:08x}, {vr(T3)}
    """)
    a(f"""
    v_or_b32 {vr(V_BIAS)}, 0x80000000, {vr(T3)}
    v_cvt_pk_bf16_f32 {vr(V_BIAS)}, {vr(V_BIAS)}, 0
    v_cmp_ne_u32 vcc, 0, {vr(T1)}
    s_nop 1
    v_cndmask_b32 {vr(V_BIAS)}, 0, {vr(V_BIAS)}, vcc
    """)
    a.c("Q normalisation")
    a("s_waitcnt vmcnt(3)")
    for (Qm, Qt) in ((QAm, QAt), (QBm, QBt)):
        a(f"v_dot2_f32_bf16 {vr(T0)}, {vr(Qm)}, {vr(Qm)}, 0")
        a(f"v_dot2_f32_bf16 {vr(T1)}, {vr(Qm+1)}, {vr(Qm+1)}, 0")
        a(f"v_dot2_f32_bf16 {vr(T0)}, {vr(Qm+2)}, {vr(Qm+2)}, {vr(T0)}")
        a(f"v_dot2_f32_bf16 {vr(T1)}, {vr(Qm+3)}, {vr(Qm+3)}, {vr(T1)}")
        a(f"v_dot2_f32_bf16 {vr(T0)}, {vr(Qt)}, {vr(Qt)}, {vr(T0)}")
        a(f"v_dot2_f32_bf16 {vr(T1)}, {vr(Qt+1)}, {vr(Qt+1)}, {vr(T1)}")
        regs = [Qm, Qm+1, Qm+2, Qm+3, Qt, Qt+1]
        for i, r in enumerate(regs):
            a(f"v_lshlrev_b32 {vr(SU+2*i)}, 16, {vr(r)}")
            a(f"v_and_b32 {vr(SU+2*i+1)}, 0xffff0000, {vr(r)}")
        a(f"v_add_f32 {vr(T0)}, {vr(T0)}, {vr(T1)}")
        a("s_nop 1")
        a(f"v_mov_b32 {vr(T1)}, {vr(T0)}")
        a("s_nop 1")
        a(f"v_permlane32_swap_b32 {vr(T0)}, {vr(T1)}")
        a("s_nop 1")
        a(f"v_add_f32 {vr(T0)}, {vr(T0)}, {vr(T1)}")
        a(f"v_sqrt_f32 {vr(T0)}, {vr(T0)}")
        a("s_nop 0")
        a(f"v_add_f32 {vr(T0)}, 0x358637bd, {vr(T0)}")
        a(f"v_rcp_f32 {vr(T0)}, {vr(T0)}")
        a("s_nop 0")
        a(f"v_mul_f32 {vr(T0)}, {vr(T0)}, {vr(T3)}")
        for i in range(12):
            a(f"v_mul_f32 {vr(SU+i)}, {vr(SU+i)}, {vr(T0)}")
        for i, r in enumerate(regs):
            a(f"v_cvt_pk_bf16_f32 {vr(r)}, {vr(SU+2*i)}, {vr(SU+2*i+1)}")
    a.c("fallback check: |t| > 16 -> true max pass")
    a(f"""
    s_and_b32 s3, s{S_T}, 0x7fffffff
    s_cmp_gt_u32 s3, 0x41800000
    s_cbranch_scc1 L_fallback
    """)
    a.label("L_bias_ready")
    a(f"v_or_b32 {vr(QAt)}, {vr(QAt)}, {vr(V_BIAS)}")
    a(f"v_or_b32 {vr(QBt)}, {vr(QBt)}, {vr(V_BIAS)}")
    a.label("L_main_start")
    a.c("stage chunk 0 into buffer 0")
    a(f"s_mov_b32 s{S_WB}, 0")
    emit_stage_write(a)
    a(f"s_mov_b32 s{S_GOFF}, {CH*40}")
    emit_stage_loads(a)
    a.c("init accumulators")
    for i in range(16):
        a(f"v_mov_b32 {vr(OA+i)}, 0")
        a(f"v_mov_b32 {vr(OB+i)}, 0")
    for i in range(8):
        a(f"v_mov_b32 {vr(PB+i)}, 0")
        a(f"v_mov_b32 {vr(VF[1]+i)}, 0")
    a(f"""
    s_mov_b32 s{S_RB}, 0
    s_mov_b32 s{S_WB}, {BUF}
    s_mov_b32 s{S_CNT}, {NCH*XN}
    v_mov_b32 {vr(V_KADDR)}, {vr(V_KL)}
    v_mov_b32 {vr(V_KBADDR)}, {vr(V_KBL)}
    s_waitcnt lgkmcnt(0)
    s_barrier
    """)
    k_reads(a, 0, 0)
    a("s_waitcnt lgkmcnt(0)")
    for m in qk(SA, 0, QAm, QAt):
        a(m)
    a("s_nop 7")
    a("s_nop 3")
    a(".p2align 6") if False else None
    ts(a, 1)
    a.label("L_loop")
    a(f"v_add_u32 {vr(V_VADDR)}, s{S_RB}, {vr(V_VL)}")
    a(f"""
    s_add_u32 s{S_RN}, s{S_RB}, {BUF}
    s_cmp_eq_u32 s{S_RN}, {BUF*NBUF}
    s_cselect_b32 s{S_RN}, 0, s{S_RN}
    """)
    for kt in range(8):
        kb, vb = kt % 2, kt % 2
        if kt == 7:
            a(f"v_add_u32 {vr(V_KADDR)}, s{S_RN}, {vr(V_KL)}")
            a(f"v_add_u32 {vr(V_KBADDR)}, s{S_RN}, {vr(V_KBL)}")
        if not (X_NOLDS or X_NOK): k_reads(a, (kt+1) % 2, (kt+1) % 8)
        if not (X_NOLDS or X_NOV): v_reads(a, vb, kt)
        if kt == 0 and not X_NOSTAGE:
            emit_stage_write(a)
        phase(a, SA, PA, qk(SB, kb, QBm, QBt) + pv(OB, (kt+1) % 2, PB))
        a("s_waitcnt lgkmcnt(0)")
        if kt == 3 and not X_NOBAR:
            a("s_barrier")
        if kt == 4 and not X_NOSTAGE:
            a(f"s_add_u32 s{S_GOFF}, s{S_GOFF}, {CH*40}")
            if XN > 1:
                a(f"s_cmp_eq_u32 s{S_GOFF}, {HEADB}")
                a(f"s_cselect_b32 s{S_GOFF}, 0, s{S_GOFF}")
            emit_stage_loads(a)
        phase(a, SB, PB, qk(SA, (kt+1) % 2, QAm, QAt) + pv(OA, vb, PA))
    a(f"""
    s_mov_b32 s{S_RB}, s{S_RN}
    s_add_u32 s{S_WB}, s{S_WB}, {BUF}
    s_cmp_eq_u32 s{S_WB}, {BUF*NBUF}
    s_cselect_b32 s{S_WB}, 0, s{S_WB}
    s_sub_u32 s{S_CNT}, s{S_CNT}, 1
    s_cmp_lg_u32 s{S_CNT}, 0
    s_cbranch_scc1 L_loop
    """)
    ts(a, 2)
    a.c("tail: PV_B(last)")
    a("s_nop 1")
    for m in pv(OB, 1, PB):
        a(m)
    a.c("epilogue")
    a(f"""
    v_and_b32 {vr(T0)}, 31, {vr(V_LANE)}
    v_lshrrev_b32 {vr(T1)}, 5, {vr(V_LANE)}
    s_lshl_b32 s3, s{S_WAVE}, 6
    v_add_u32 {vr(T2)}, s3, {vr(T0)}
    v_mul_u32_u24 {vr(T2)}, 40, {vr(T2)}
    v_lshl_add_u32 {vr(T3)}, {vr(T1)}, 3, {vr(T2)}
    v_lshl_add_u32 {vr(SU+20)}, {vr(T1)}, 24, {vr(T2)}
    v_cmp_ne_u32 vcc, 0, {vr(T1)}
    s_nop 7
    s_nop 7
    """)
    for ti, O in enumerate((OA, OB)):
        a(f"v_rcp_f32 {vr(T0)}, {vr(O+12)}")
        a("s_nop 0")
        for i in range(12):
            a(f"v_mul_f32 {vr(SU+i)}, {vr(O+i)}, {vr(T0)}")
        for i in range(6):
            a(f"v_cvt_pk_bf16_f32 {vr(ST+i)}, {vr(SU+2*i)}, {vr(SU+2*i+1)}")
        o = ti*32*40
        a(f"buffer_store_dwordx2 {vr(ST,2)}, {vr(T3)}, s[{SRD_O}:{SRD_O+3}], 0 offen offset:{o}")
        a(f"buffer_store_dwordx2 {vr(ST+2,2)}, {vr(T3)}, s[{SRD_O}:{SRD_O+3}], 0 offen offset:{o+16}")
        a(f"buffer_store_dwordx2 {vr(ST+4,2)}, {vr(SU+20)}, s[{SRD_O}:{SRD_O+3}], 0 offen offset:{o+32}")
        a("s_nop 1")
    if DBG:
        a(f"""
        s_waitcnt vmcnt(0)
        s_memtime s[66:67]
        s_memrealtime s[72:73]
        s_waitcnt lgkmcnt(0)
        s_cmp_lg_u32 s{S_WAVE}, 0
        s_cbranch_scc1 L_end
        s_cmp_ge_u32 s2, {256 if DBG2 else 8}
        s_cbranch_scc1 L_end
        s_lshl_b32 s3, s2, 5
        v_mov_b32 v0, s3
        v_mov_b32 v2, s60
        v_mov_b32 v3, s62
        v_mov_b32 v4, s64
        v_mov_b32 v5, s66
        v_mov_b32 v6, s70
        v_mov_b32 v7, s72
        v_mov_b32 v8, {"s76" if DBG2 else 0}
        v_mov_b32 v9, {"s78" if DBG2 else 0}
        s_mov_b64 exec, 1
        global_store_dwordx4 v0, v[2:5], s[58:59]
        global_store_dwordx4 v0, v[6:9], s[58:59] offset:16
        """)
    a.label("L_end")
    a("s_endpgm")
    a.label("L_fallback")
    a(f"""
    s_waitcnt vmcnt(0)
    v_mov_b32 {vr(OA)}, 0xff800000
    v_mov_b32 {vr(OB)}, 0xff800000
    s_mov_b32 s{S_GOFF}, 0
    s_mov_b32 s{S_WB}, 0
    s_mov_b32 s{S_CNT}, {NCH}
    """)
    a.label("L_fb_chunk")
    emit_stage_loads(a)
    emit_stage_write(a)
    a(f"""
    s_waitcnt lgkmcnt(0)
    s_barrier
    v_mov_b32 {vr(V_KADDR)}, {vr(V_KL)}
    v_mov_b32 {vr(V_KBADDR)}, {vr(V_KBL)}
    s_mov_b32 s3, 8
    """)
    a.label("L_fb_tile")
    k_reads(a, 0, 0)
    a("s_waitcnt lgkmcnt(0)")
    for m in qk(SA, 0, QAm, QAt) + qk(SB, 0, QBm, QBt):
        a(m)
    a("s_nop 7\ns_nop 7")
    for S, O in ((SA, OA), (SB, OB)):
        for i in range(0, 16, 2):
            a(f"v_max3_f32 {vr(O)}, {vr(S+i)}, {vr(S+i+1)}, {vr(O)}")
    a(f"""
    v_add_u32 {vr(V_KADDR)}, 512, {vr(V_KADDR)}
    v_add_u32 {vr(V_KBADDR)}, 256, {vr(V_KBADDR)}
    s_sub_u32 s3, s3, 1
    s_cmp_lg_u32 s3, 0
    s_cbranch_scc1 L_fb_tile
    s_barrier
    s_add_u32 s{S_GOFF}, s{S_GOFF}, {CH*40}
    s_sub_u32 s{S_CNT}, s{S_CNT}, 1
    s_cmp_lg_u32 s{S_CNT}, 0
    s_cbranch_scc1 L_fb_chunk
    v_lshrrev_b32 {vr(T3)}, 5, {vr(V_LANE)}
    v_cmp_ne_u32 vcc, 0, {vr(T3)}
    """)
    for O, Qt in ((OA, QAt), (OB, QBt)):
        a(f"""
        v_mov_b32 {vr(T1)}, {vr(O)}
        s_nop 1
        v_permlane32_swap_b32 {vr(O)}, {vr(T1)}
        s_nop 1
        v_max_f32 {vr(T0)}, {vr(O)}, {vr(T1)}
        v_sub_f32 {vr(T0)}, 0, {vr(T0)}
        v_cvt_pk_bf16_f32 {vr(T1)}, {vr(T0)}, 0
        v_lshlrev_b32 {vr(T2)}, 16, {vr(T1)}
        v_sub_f32 {vr(T2)}, {vr(T0)}, {vr(T2)}
        v_cvt_pk_bf16_f32 {vr(T1)}, {vr(T0)}, {vr(T2)}
        v_cndmask_b32 {vr(T1)}, 0, {vr(T1)}, vcc
        v_or_b32 {vr(Qt)}, {vr(Qt)}, {vr(T1)}
        """)
    a(f"s_mov_b32 s{S_GOFF}, 0")
    emit_stage_loads(a)
    a("s_branch L_main_start")
    ftr = f"""
.section .rodata,"a"
.p2align 6
.amdhsa_kernel {name}
  .amdhsa_next_free_vgpr {NV}
  .amdhsa_next_free_sgpr 102
  .amdhsa_accum_offset {NV}
  .amdhsa_group_segment_fixed_size 0
  .amdhsa_kernarg_size 56
  .amdhsa_user_sgpr_count 2
  .amdhsa_user_sgpr_kernarg_segment_ptr 1
  .amdhsa_system_sgpr_workgroup_id_x 1
.end_amdhsa_kernel
"""
    return hdr + a.text() + ftr

if __name__ == "__main__":
    av = [x for x in sys.argv[1:] if not x.startswith("--")]
    out = av[0] if av else "standalone__qk_norm__prompt.s"
    open(out, "w").write(gen())
```

```python
import sys

class Asm:
    def __init__(self):
        self.l = []
    def __call__(self, s):
        for x in s.strip("\n").split("\n"):
            x = x.strip()
            if x:
                self.l.append("  " + x)
    def label(self, s):
        self.l.append(s + ":")
    def c(self, s):
        self.l.append("  ; " + s)
    def text(self):
        return "\n".join(self.l) + "\n"

def vr(a, n=1):
    return f"v{a}" if n == 1 else f"v[{a}:{a+n-1}]"

OPT = {}
for _x in sys.argv[1:]:
    if _x.startswith("--"):
        k, _, v = _x[2:].partition("=")
        OPT[k] = v if v else "1"
def opt(k, d=None): return OPT.get(k, d)

CH = 256
NCH = 2048 // CH
KA0, KA1, KB0, KB1, VOFF = 0, 4096, 8192, 10240, 12288
BUF = 24576
XR = 2 * BUF
QSLOT = 3072
RSLOT = 6656
LDS = XR + 8 * RSLOT
HEADB = 2048 * 40
V_TID, V_LANE = 0, 1
V_KADDR, V_KBADDR, V_VADDR = 2, 3, 4
V_KL, V_KBL, V_VL = 5, 6, 7
V_GOFF, V_WL, V_WL2, V_WA, V_WA2 = 8, 9, 10, 11, 12
V_BIAS = 13
T0, T1, T2, T3 = 14, 15, 16, 17
V_IDX = 18
V_X = 19
S = [20, 36, 52, 68]
O = [84, 100, 116, 132]
Q = [(148 + 6*i, 152 + 6*i) for i in range(4)]
KF = [(172, 176), (178, 182)]
VF = [184, 192]
ST = 200
SU = 210
NV = 232

S_WAVE, S_ROLE, S_BH, S_QB = 32, 33, 30, 31
S_RN = 42
S_GOFF = 43
S_CNT = 44
S_T = 34
S_QROW = 50
SRD_K, SRD_V, SRD_Q, SRD_O, SRD_S = 8, 12, 4, 16, 36

LOG2E = 0x3fb8aa3b

def emit_stage_compute_K(a):
    a(f"v_dot2_f32_bf16 {vr(T0)}, {vr(ST)}, {vr(ST)}, 0")
    a(f"v_dot2_f32_bf16 {vr(T1)}, {vr(ST+1)}, {vr(ST+1)}, 0")
    for i in range(2, 10, 2):
        a(f"v_dot2_f32_bf16 {vr(T0)}, {vr(ST+i)}, {vr(ST+i)}, {vr(T0)}")
        a(f"v_dot2_f32_bf16 {vr(T1)}, {vr(ST+i+1)}, {vr(ST+i+1)}, {vr(T1)}")
    for i in range(10):
        a(f"v_lshlrev_b32 {vr(SU+2*i)}, 16, {vr(ST+i)}")
        a(f"v_and_b32 {vr(SU+2*i+1)}, 0xffff0000, {vr(ST+i)}")
    a(f"v_add_f32 {vr(T0)}, {vr(T0)}, {vr(T1)}")
    a(f"v_sqrt_f32 {vr(T0)}, {vr(T0)}")
    a("s_nop 0")
    a(f"v_add_f32 {vr(T0)}, 0x358637bd, {vr(T0)}")
    a(f"v_rcp_f32 {vr(T2)}, {vr(T0)}")
    a("s_nop 0")
    for i in range(10):
        a(f"v_pk_mul_f32 {vr(SU+2*i,2)}, {vr(SU+2*i,2)}, {vr(T2,2)} op_sel_hi:[1,0]")
    for i in range(10):
        a(f"v_cvt_pk_bf16_f32 {vr(ST+i)}, {vr(SU+2*i)}, {vr(SU+2*i+1)}")
    a(f"ds_write_b128 {vr(V_WA)}, {vr(ST,4)} offset:{KA0}")
    a(f"ds_write_b128 {vr(V_WA)}, {vr(ST+4,4)} offset:{KA1}")
    a(f"ds_write_b64 {vr(V_WA2)}, {vr(ST+8,2)} offset:{KB0}")

def emit_stage_compute_V(a):
    a(f"ds_write_b128 {vr(V_WA)}, {vr(ST,4)} offset:{VOFF}")
    a(f"ds_write_b128 {vr(V_WA)}, {vr(ST+4,4)} offset:{VOFF+16}")
    a(f"ds_write_b64 {vr(V_WA)}, {vr(ST+8,2)} offset:{VOFF+32}")

def emit_stage_loads(a):
    a(f"buffer_load_dwordx4 {vr(ST,4)}, {vr(V_GOFF)}, s[{SRD_S}:{SRD_S+3}], s{S_GOFF} offen")
    a(f"buffer_load_dwordx4 {vr(ST+4,4)}, {vr(V_GOFF)}, s[{SRD_S}:{SRD_S+3}], s{S_GOFF} offen offset:16")
    a(f"buffer_load_dwordx2 {vr(ST+8,2)}, {vr(V_GOFF)}, s[{SRD_S}:{SRD_S+3}], s{S_GOFF} offen offset:32")

uid = [0]
def emit_stage_write(a, wb, vm=0):
    uid[0] += 1
    u = uid[0]
    a(f"v_add_u32 {vr(V_WA)}, {wb}, {vr(V_WL)}")
    a(f"v_add_u32 {vr(V_WA2)}, {wb}, {vr(V_WL2)}")
    a(f"s_waitcnt vmcnt({vm})")
    a(f"s_cmp_lg_u32 s{S_ROLE}, 0")
    a(f"s_cbranch_scc1 L_stV{u}")
    emit_stage_compute_K(a)
    a(f"s_branch L_stE{u}")
    a.label(f"L_stV{u}")
    emit_stage_compute_V(a)
    a.label(f"L_stE{u}")

def k_reads(a, buf, m, ka=V_KADDR, kb=V_KBADDR, stride=2):
    mm, t = KF[buf]
    a(f"ds_read_b128 {vr(mm,4)}, {vr(ka)} offset:{m*512*stride}")
    a(f"ds_read_b64 {vr(t,2)}, {vr(kb)} offset:{m*256*stride}")

def v_reads(a, buf, m):
    for j in range(2):
        for half in range(2):
            off = (m*64 + 16*j + 4*half) * 48
            a(f"ds_read_b64_tr_b16 {vr(VF[buf] + 4*j + 2*half, 2)}, {vr(V_VADDR)} offset:{off}")

QKV = opt("qk", "bf16")
def qk(Sx, kbuf, qi):
    m, t = KF[kbuf]
    Qm, Qt = Q[qi]
    if QKV == "bf16":
        return [f"v_mfma_f32_32x32x8_bf16 {vr(Sx,16)}, {vr(t,2)}, {vr(Qt,2)}, 0",
                f"v_mfma_f32_32x32x16_bf16 {vr(Sx,16)}, {vr(m,4)}, {vr(Qm,4)}, {vr(Sx,16)}"]
    if QKV == "fp8tail":
        return [f"v_mfma_f32_32x32x16_fp8_fp8 {vr(Sx,16)}, {vr(t,2)}, {vr(Qt,2)}, 0",
                f"v_mfma_f32_32x32x16_bf16 {vr(Sx,16)}, {vr(m,4)}, {vr(Qm,4)}, {vr(Sx,16)}"]
    if QKV == "fp8x2":
        return [f"v_mfma_f32_32x32x16_fp8_fp8 {vr(Sx,16)}, {vr(t,2)}, {vr(Qt,2)}, 0",
                f"v_mfma_f32_32x32x16_fp8_fp8 {vr(Sx,16)}, {vr(m,2)}, {vr(Qm,2)}, {vr(Sx,16)}"]
    if QKV == "fp6":
        return [f"v_mfma_f32_32x32x64_f8f6f4 {vr(Sx,16)}, {vr(m,6)}, {vr(Qm,6)}, 0 cbsz:2 blgp:2"]
    if QKV == "none":
        return []
    raise ValueError(QKV)

def pv(Ox, vbuf, Sx):
    if opt("nopv"): return []
    return [f"v_smfmac_f32_32x32x32_bf16 {vr(Ox,16)}, {vr(VF[vbuf]+4*j,4)}, {vr(Sx+8*j,8)}, {vr(V_IDX)}" for j in range(2)]

def phase(a, Sx, mfmas):
    n = len(mfmas)
    if n == 0:
        per = [16]; mfmas = [None]; n = 1
    else:
        per = [16 // n + (1 if i < 16 % n else 0) for i in range(n)]
    e = 0
    for g in range(n):
        if mfmas[g]: a(mfmas[g])
        for _ in range(per[g]):
            if not opt("noexp"):
                a(f"v_exp_f32 {vr(Sx+e)}, {vr(Sx+e)}")
            e += 1

DBG2 = bool(opt("dbg2"))
XN = int(opt("xn", "1"))
def ts(a, i):
    if DBG2:
        a(f"s_memtime s[{60+2*i}:{61+2*i}]")
        a(f"s_memrealtime s[{74+2*i}:{75+2*i}]")

def gen():
    a = Asm()
    dbg_head = "s_memtime s[60:61]\ns_memrealtime s[70:71]\ns_load_dwordx2 s[58:59], s[0:1], 48" if DBG2 else ""
    name = "standalone__qk_norm__prompt_kernel"
    hdr = f"""; qk-norm attention, hand-written generator (gen/gen2.py)
; @launch grid=(256,1,1) block=(512,1,1) lds={LDS}
.amdgcn_target "amdgcn-amd-amdhsa--gfx950"
.text
.globl {name}
.p2align 8
.type {name},@function
{name}:
"""
    a(f"""
    s_cmp_ge_u32 s2, 256
    s_cbranch_scc1 L_end
    {dbg_head}
    s_load_dwordx4 s[20:23], s[0:1], 0
    s_load_dwordx4 s[24:27], s[0:1], 16
    s_load_dwordx2 s[28:29], s[0:1], 32
    s_and_b32 s{S_BH}, s2, 7
    s_lshr_b32 s3, s2, 5
    s_lshl_b32 s3, s3, 3
    s_add_u32 s{S_BH}, s{S_BH}, s3
    s_lshr_b32 s{S_QB}, s2, 3
    s_and_b32 s{S_QB}, s{S_QB}, 3
    v_and_b32 {vr(V_LANE)}, 63, {vr(V_TID)}
    v_lshrrev_b32 {vr(T0)}, 6, {vr(V_TID)}
    s_mul_i32 s35, s{S_BH}, {HEADB}
    v_readfirstlane_b32 s{S_WAVE}, {vr(T0)}
    s_mul_i32 s45, s{S_QB}, {512*40}
    s_add_u32 s45, s45, s35
    s_and_b32 s46, s{S_BH}, 31
    s_lshl_b32 s46, s46, 1
    s_and_b32 s47, s46, 0x7c
    s_lshr_b32 s{S_ROLE}, s{S_WAVE}, 2
    s_and_b32 s3, s{S_WAVE}, 3
    s_lshl_b32 s3, s3, 7
    s_lshl_b32 s{S_QROW}, s{S_ROLE}, 6
    s_add_u32 s{S_QROW}, s{S_QROW}, s3
    v_and_b32 {vr(T0)}, 31, {vr(V_LANE)}
    v_lshrrev_b32 {vr(T1)}, 5, {vr(V_LANE)}
    v_add_u32 {vr(T2)}, s{S_QROW}, {vr(T0)}
    v_mul_u32_u24 {vr(T2)}, 40, {vr(T2)}
    v_lshl_add_u32 {vr(T3)}, {vr(T1)}, 4, {vr(T2)}
    v_lshl_add_u32 {vr(SU)}, {vr(T1)}, 24, {vr(T2)}
    v_and_b32 {vr(T2)}, 255, {vr(V_TID)}
    v_mul_u32_u24 {vr(V_GOFF)}, 40, {vr(T2)}
    s_mov_b32 s{S_GOFF}, 0
    s_waitcnt lgkmcnt(0)
    s_load_dword s{S_T}, s[26:27], s47
    s_add_u32 s{SRD_Q}, s20, s45
    s_addc_u32 s{SRD_Q+1}, s21, 0
    s_mov_b32 s{SRD_Q+2}, {512*40}
    s_mov_b32 s{SRD_Q+3}, 0x00020000
    s_add_u32 s{SRD_K}, s22, s35
    s_addc_u32 s{SRD_K+1}, s23, 0
    s_add_u32 s{SRD_V}, s24, s35
    s_addc_u32 s{SRD_V+1}, s25, 0
    s_cmp_eq_u32 s{S_ROLE}, 0
    s_cselect_b32 s{SRD_S}, s{SRD_K}, s{SRD_V}
    s_cselect_b32 s{SRD_S+1}, s{SRD_K+1}, s{SRD_V+1}
    s_mov_b32 s{SRD_S+2}, {HEADB}
    s_mov_b32 s{SRD_S+3}, 0x00020000
    """)
    QA, QB = Q[2], Q[3]
    a.c("Q loads: voffset = (qrow + n)*40 + 16h ; tail: h==0 ? row*40+32 : OOB")
    a(f"""
    buffer_load_dwordx4 {vr(QA[0],4)}, {vr(T3)}, s[{SRD_Q}:{SRD_Q+3}], 0 offen
    buffer_load_dwordx2 {vr(QA[1],2)}, {vr(SU)}, s[{SRD_Q}:{SRD_Q+3}], 0 offen offset:32
    buffer_load_dwordx4 {vr(QB[0],4)}, {vr(T3)}, s[{SRD_Q}:{SRD_Q+3}], 0 offen offset:{32*40}
    buffer_load_dwordx2 {vr(QB[1],2)}, {vr(SU)}, s[{SRD_Q}:{SRD_Q+3}], 0 offen offset:{32*40+32}
    """)
    emit_stage_loads(a)
    a(f"""
    s_add_u32 s{SRD_O}, s28, s45
    s_addc_u32 s{SRD_O+1}, s29, 0
    s_mov_b32 s{SRD_O+2}, {512*40}
    s_mov_b32 s{SRD_O+3}, 0x00020000
    """)
    a(f"""
    s_cmp_eq_u32 s{S_ROLE}, 0
    s_cselect_b32 s3, 16, 48
    v_mul_u32_u24 {vr(V_WL)}, s3, {vr(T2)}
    v_lshlrev_b32 {vr(V_WL2)}, 3, {vr(T2)}
    """)
    a.c("LDS constants: K role writes KB1 plane [1,1,0,0]; V role writes ones chunk [1,0,0,0] at +40")
    a(f"""
    s_mov_b32 s49, 0x3f803f80
    s_mov_b32 s48, 0x00003f80
    s_cselect_b32 s3, s49, s48
    v_mov_b32 {vr(SU+2)}, s3
    v_mov_b32 {vr(SU+3)}, 0
    s_mov_b32 s48, {KB1}
    s_mov_b32 s49, {VOFF+40}
    s_cselect_b32 s3, s48, s49
    v_mov_b32 {vr(SU+4)}, s3
    v_add_u32 {vr(SU+5)}, {vr(SU+4)}, {vr(V_WL)}
    v_add_u32 {vr(SU+4)}, {vr(SU+4)}, {vr(V_WL2)}
    s_cselect_b64 vcc, -1, 0
    v_cndmask_b32 {vr(SU+4)}, {vr(SU+5)}, {vr(SU+4)}, vcc
    """)
    for b in range(2):
        a(f"ds_write_b64 {vr(SU+4)}, {vr(SU+2,2)} offset:{b*BUF}")
    a.c("read lane parts (T0 = n, T1 = h)")
    a(f"""
    s_lshl_b32 s3, s{S_ROLE}, 9
    v_lshlrev_b32 {vr(V_KL)}, 4, {vr(T0)}
    v_lshl_add_u32 {vr(V_KL)}, {vr(T1)}, 12, {vr(V_KL)}
    v_add_u32 {vr(V_KL)}, s3, {vr(V_KL)}
    s_lshl_b32 s3, s{S_ROLE}, 8
    s_add_u32 s3, s3, {KB0}
    v_lshlrev_b32 {vr(V_KBL)}, 3, {vr(T0)}
    v_lshl_add_u32 {vr(V_KBL)}, {vr(T1)}, 11, {vr(V_KBL)}
    v_add_u32 {vr(V_KBL)}, s3, {vr(V_KBL)}
    """)
    a(f"""
    v_bfe_u32 {vr(T2)}, {vr(V_LANE)}, 2, 2
    v_lshl_add_u32 {vr(T2)}, {vr(T1)}, 3, {vr(T2)}
    v_mul_u32_u24 {vr(V_VL)}, 48, {vr(T2)}
    v_and_b32 {vr(T2)}, 3, {vr(V_LANE)}
    v_min_u32 {vr(T3)}, 1, {vr(T2)}
    v_add_u32 {vr(T3)}, 4, {vr(T3)}
    v_and_b32 {vr(SU)}, 16, {vr(V_LANE)}
    v_cmp_ne_u32 vcc, 0, {vr(SU)}
    s_mul_i32 s3, s{S_ROLE}, 1536
    s_add_u32 s3, s3, {VOFF}
    v_cndmask_b32 {vr(T2)}, {vr(T2)}, {vr(T3)}, vcc
    v_lshl_add_u32 {vr(V_VL)}, {vr(T2)}, 3, {vr(V_VL)}
    v_add_u32 {vr(V_VL)}, s3, {vr(V_VL)}
    v_mov_b32 {vr(V_IDX)}, 0xdddd
    """)
    a.c("exchange lane address: V_X = lane*16 (+ slot base added at use)")
    a(f"v_lshlrev_b32 {vr(V_X)}, 4, {vr(V_LANE)}")
    a.c("t -> scale")
    a(f"""
    s_waitcnt lgkmcnt(0)
    s_and_b32 s46, s46, 2
    s_lshl_b32 s46, s46, 3
    s_lshr_b32 s{S_T}, s{S_T}, s46
    s_lshl_b32 s{S_T}, s{S_T}, 16
    v_mov_b32 {vr(T3)}, s{S_T}
    v_mul_f32 {vr(T3)}, 0x{LOG2E:08x}, {vr(T3)}
    """)
    a(f"""
    v_or_b32 {vr(V_BIAS)}, 0x80000000, {vr(T3)}
    v_cvt_pk_bf16_f32 {vr(V_BIAS)}, {vr(V_BIAS)}, 0
    v_cmp_ne_u32 vcc, 0, {vr(T1)}
    s_nop 1
    v_cndmask_b32 {vr(V_BIAS)}, 0, {vr(V_BIAS)}, vcc
    """)
    a.c("Q normalisation (own tiles -> local 2,3)")
    a("s_waitcnt vmcnt(3)")
    for (Qm, Qt) in (QA, QB):
        a(f"v_dot2_f32_bf16 {vr(T0)}, {vr(Qm)}, {vr(Qm)}, 0")
        a(f"v_dot2_f32_bf16 {vr(T1)}, {vr(Qm+1)}, {vr(Qm+1)}, 0")
        a(f"v_dot2_f32_bf16 {vr(T0)}, {vr(Qm+2)}, {vr(Qm+2)}, {vr(T0)}")
        a(f"v_dot2_f32_bf16 {vr(T1)}, {vr(Qm+3)}, {vr(Qm+3)}, {vr(T1)}")
        a(f"v_dot2_f32_bf16 {vr(T0)}, {vr(Qt)}, {vr(Qt)}, {vr(T0)}")
        a(f"v_dot2_f32_bf16 {vr(T1)}, {vr(Qt+1)}, {vr(Qt+1)}, {vr(T1)}")
        regs = [Qm, Qm+1, Qm+2, Qm+3, Qt, Qt+1]
        for i, r in enumerate(regs):
            a(f"v_lshlrev_b32 {vr(SU+2*i)}, 16, {vr(r)}")
            a(f"v_and_b32 {vr(SU+2*i+1)}, 0xffff0000, {vr(r)}")
        a(f"v_add_f32 {vr(T0)}, {vr(T0)}, {vr(T1)}")
        a("s_nop 1")
        a(f"v_mov_b32 {vr(T1)}, {vr(T0)}")
        a("s_nop 1")
        a(f"v_permlane32_swap_b32 {vr(T0)}, {vr(T1)}")
        a("s_nop 1")
        a(f"v_add_f32 {vr(T0)}, {vr(T0)}, {vr(T1)}")
        a(f"v_sqrt_f32 {vr(T0)}, {vr(T0)}")
        a("s_nop 0")
        a(f"v_add_f32 {vr(T0)}, 0x358637bd, {vr(T0)}")
        a(f"v_rcp_f32 {vr(T0)}, {vr(T0)}")
        a("s_nop 0")
        a(f"v_mul_f32 {vr(T0)}, {vr(T0)}, {vr(T3)}")
        for i in range(12):
            a(f"v_mul_f32 {vr(SU+i)}, {vr(SU+i)}, {vr(T0)}")
        for i, r in enumerate(regs):
            a(f"v_cvt_pk_bf16_f32 {vr(r)}, {vr(SU+2*i)}, {vr(SU+2*i+1)}")
    a.c("publish own Q' frags (no bias) for the partner wave (w^4)")
    a(f"""
    s_mul_i32 s3, s{S_WAVE}, {QSLOT}
    s_add_u32 s3, s3, {XR}
    v_add_u32 {vr(T0)}, s3, {vr(V_X)}
    v_lshlrev_b32 {vr(T1)}, 3, {vr(V_LANE)}
    v_add_u32 {vr(T1)}, s3, {vr(T1)}
    ds_write_b128 {vr(T0)}, {vr(QA[0],4)}
    ds_write_b64 {vr(T1)}, {vr(QA[1],2)} offset:1024
    ds_write_b128 {vr(T0)}, {vr(QB[0],4)} offset:1536
    ds_write_b64 {vr(T1)}, {vr(QB[1],2)} offset:{1536+1024}
    """)
    a.c("stage chunk 0 into buffer 0, prefetch chunk 1")
    emit_stage_write(a, 0)
    a(f"s_mov_b32 s{S_GOFF}, {CH*40}")
    emit_stage_loads(a)
    a.c("init accumulators")
    for o in O:
        for i in range(16):
            a(f"v_mov_b32 {vr(o+i)}, 0")
    a(f"""
    s_xor_b32 s3, s{S_WAVE}, 4
    s_mul_i32 s3, s3, {QSLOT}
    s_add_u32 s3, s3, {XR}
    v_add_u32 {vr(T0)}, s3, {vr(V_X)}
    v_lshlrev_b32 {vr(T1)}, 3, {vr(V_LANE)}
    v_add_u32 {vr(T1)}, s3, {vr(T1)}
    s_waitcnt lgkmcnt(0)
    s_barrier
    ds_read_b128 {vr(Q[0][0],4)}, {vr(T0)}
    ds_read_b64 {vr(Q[0][1],2)}, {vr(T1)} offset:1024
    ds_read_b128 {vr(Q[1][0],4)}, {vr(T0)} offset:1536
    ds_read_b64 {vr(Q[1][1],2)}, {vr(T1)} offset:{1536+1024}
    """)
    a.c("fallback check: |t| > 16 -> true max pass")
    a(f"""
    s_and_b32 s3, s{S_T}, 0x7fffffff
    s_cmp_gt_u32 s3, 0x41800000
    s_cbranch_scc1 L_fallback
    s_waitcnt lgkmcnt(0)
    """)
    for i in range(4):
        a(f"v_or_b32 {vr(Q[i][1])}, {vr(Q[i][1])}, {vr(V_BIAS)}")
    a.label("L_frags")
    a(f"""
    v_mov_b32 {vr(V_KADDR)}, {vr(V_KL)}
    v_mov_b32 {vr(V_KBADDR)}, {vr(V_KBL)}
    v_mov_b32 {vr(V_VADDR)}, {vr(V_VL)}
    """)
    k_reads(a, 0, 0)
    v_reads(a, 0, 0)
    for i in range(16):
        a(f"v_mov_b32 {vr(S[3]+i)}, 0")
    for i in range(8):
        a(f"v_mov_b32 {vr(VF[1]+i)}, 0")
    a(f"""
    s_mov_b32 s{S_RN}, {BUF}
    s_mov_b32 s{S_CNT}, {NCH*XN}
    s_mov_b32 s{S_GOFF}, {CH*40}
    s_waitcnt lgkmcnt(4)
    """)
    for i in range(2):
        for m in (qk(S[i], 0, i) if QKV != "none" else []):
            a(m)
    a("s_nop 7")
    a("s_nop 3")
    ts(a, 1)
    a.label("L_loop")
    ORDER = opt("order", "PPQQ")
    for m in range(4):
        for i in range(4):
            if i == 0:
                a("s_waitcnt lgkmcnt(0)")
                if m == 3:
                    if not opt("nobar"): a("s_barrier")
                    a(f"v_add_u32 {vr(V_KADDR)}, s{S_RN}, {vr(V_KL)}")
                    a(f"v_add_u32 {vr(V_KBADDR)}, s{S_RN}, {vr(V_KBL)}")
                if not opt("nolds"): k_reads(a, (m+1) % 2, (m+1) % 4)
            if i == 2:
                a("s_waitcnt lgkmcnt(0)")
                if m == 3:
                    a(f"v_add_u32 {vr(V_VADDR)}, s{S_RN}, {vr(V_VL)}")
                if not opt("nolds"): v_reads(a, (m+1) % 2, (m+1) % 4)
            if m == 0 and i == 1 and not opt("nostage"):
                u = "L_skipst"
                a(f"s_cmp_eq_u32 s{S_CNT}, 1")
                a(f"s_cbranch_scc1 {u}")
                emit_stage_write(a, f"s{S_RN}")
                a(f"s_add_u32 s{S_GOFF}, s{S_GOFF}, {CH*40}")
                if XN > 1:
                    a(f"s_cmp_eq_u32 s{S_GOFF}, {HEADB}")
                    a(f"s_cselect_b32 s{S_GOFF}, 0, s{S_GOFF}")
                a(f"s_cmp_eq_u32 s{S_CNT}, 2")
                a(f"s_cbranch_scc1 {u}")
                emit_stage_loads(a)
                a.label(u)
            P = pv(O[(i-1) % 4], (m-1) % 2 if i == 0 else m % 2, S[(i-1) % 4])
            Qk = qk(S[(i+2) % 4], (m+1) % 2 if i >= 2 else m % 2, (i+2) % 4)
            if ORDER == "PPQQ" or len(P) != 2 or len(Qk) != 2:
                ms = P + Qk
            elif ORDER == "PQPQ":
                ms = [P[0], Qk[0], P[1], Qk[1]]
            elif ORDER == "QPQP":
                ms = [Qk[0], P[0], Qk[1], P[1]]
            elif ORDER == "QQPP":
                ms = Qk + P
            phase(a, S[i], ms)
    a(f"""
    s_xor_b32 s{S_RN}, s{S_RN}, {BUF}
    s_sub_u32 s{S_CNT}, s{S_CNT}, 1
    s_cmp_lg_u32 s{S_CNT}, 0
    s_cbranch_scc1 L_loop
    """)
    ts(a, 2)
    a.c("tail: PV(last) for local tile 3; send partials of local tiles 0,1")
    a(f"""
    s_mul_i32 s3, s{S_WAVE}, {RSLOT}
    s_add_u32 s3, s3, {XR}
    v_add_u32 {vr(T0)}, s3, {vr(V_X)}
    v_lshlrev_b32 {vr(T1)}, 2, {vr(V_LANE)}
    v_add_u32 {vr(T1)}, s3, {vr(T1)}
    """)
    for m in pv(O[3], 1, S[3]):
        a(m)
    for ti in range(2):
        o = ti * 3328
        for k in range(3):
            a(f"ds_write_b128 {vr(T0)}, {vr(O[ti]+4*k,4)} offset:{o + 1024*k}")
        a(f"ds_write_b32 {vr(T1)}, {vr(O[ti]+12)} offset:{o + 3072}")
    a(f"""
    s_xor_b32 s3, s{S_WAVE}, 4
    s_mul_i32 s3, s3, {RSLOT}
    s_add_u32 s3, s3, {XR}
    v_add_u32 {vr(T0)}, s3, {vr(V_X)}
    v_lshlrev_b32 {vr(T1)}, 2, {vr(V_LANE)}
    v_add_u32 {vr(T1)}, s3, {vr(T1)}
    v_and_b32 {vr(T2)}, 31, {vr(V_LANE)}
    v_lshrrev_b32 {vr(T3)}, 5, {vr(V_LANE)}
    v_add_u32 {vr(T2)}, s{S_QROW}, {vr(T2)}
    v_mul_u32_u24 {vr(T2)}, 40, {vr(T2)}
    v_lshl_add_u32 {vr(V_WA)}, {vr(T3)}, 4, {vr(T2)}
    v_lshl_add_u32 {vr(V_WA2)}, {vr(T3)}, 24, {vr(T2)}
    s_waitcnt lgkmcnt(0)
    s_barrier
    """)
    for ti in range(2):
        o = ti * 3328
        for k in range(3):
            a(f"ds_read_b128 {vr(S[ti]+4*k,4)}, {vr(T0)} offset:{o + 1024*k}")
        a(f"ds_read_b32 {vr(S[ti]+12)}, {vr(T1)} offset:{o + 3072}")
    for ti in range(2):
        Ox = O[2+ti]
        a(f"s_waitcnt lgkmcnt({4 if ti == 0 else 0})")
        a(f"v_add_f32 {vr(T2)}, {vr(Ox+12)}, {vr(S[ti]+12)}")
        a(f"v_rcp_f32 {vr(T2)}, {vr(T2)}")
        for i in range(12):
            a(f"v_add_f32 {vr(SU+i)}, {vr(Ox+i)}, {vr(S[ti]+i)}")
        for i in range(12):
            a(f"v_mul_f32 {vr(SU+i)}, {vr(SU+i)}, {vr(T2)}")
        D = ST if ti == 0 else KF[0][0]
        for i in range(6):
            a(f"v_cvt_pk_bf16_f32 {vr(D+i)}, {vr(SU+2*i)}, {vr(SU+2*i+1)}")
        a("s_nop 1")
        a(f"v_permlane32_swap_b32 {vr(D)}, {vr(D+2)}")
        a(f"v_permlane32_swap_b32 {vr(D+1)}, {vr(D+3)}")
        a("s_nop 1")
        o = ti*32*40
        a(f"buffer_store_dwordx4 {vr(D,4)}, {vr(V_WA)}, s[{SRD_O}:{SRD_O+3}], 0 offen offset:{o}")
        a(f"buffer_store_dwordx2 {vr(D+4,2)}, {vr(V_WA2)}, s[{SRD_O}:{SRD_O+3}], 0 offen offset:{o+32}")
    if DBG2:
        a(f"""
        s_waitcnt vmcnt(0)
        s_memtime s[66:67]
        s_memrealtime s[72:73]
        s_waitcnt lgkmcnt(0)
        s_cmp_lg_u32 s{S_WAVE}, 0
        s_cbranch_scc1 L_end
        s_lshl_b32 s3, s2, 5
        v_mov_b32 v0, s3
        v_mov_b32 v2, s60
        v_mov_b32 v3, s62
        v_mov_b32 v4, s64
        v_mov_b32 v5, s66
        v_mov_b32 v6, s70
        v_mov_b32 v7, s72
        v_mov_b32 v8, s76
        v_mov_b32 v9, s78
        s_mov_b64 exec, 1
        global_store_dwordx4 v0, v[2:5], s[58:59]
        global_store_dwordx4 v0, v[6:9], s[58:59] offset:16
        """)
    a.label("L_end")
    a("s_endpgm")
    a.label("L_fallback")
    MX = [O[i] for i in range(4)]
    FK, FKB = V_KADDR, V_KBADDR
    a(f"""
    s_waitcnt vmcnt(0) lgkmcnt(0)
    s_mov_b32 s{S_GOFF}, 0
    s_mov_b32 s{S_CNT}, {NCH}
    """)
    for i in range(4):
        a(f"v_mov_b32 {vr(MX[i])}, 0xff800000")
    a("s_barrier")
    a.label("L_fb_chunk")
    emit_stage_loads(a)
    emit_stage_write(a, 0)
    a(f"""
    s_waitcnt lgkmcnt(0)
    s_barrier
    v_and_b32 {vr(T0)}, 31, {vr(V_LANE)}
    v_lshrrev_b32 {vr(T1)}, 5, {vr(V_LANE)}
    v_lshlrev_b32 {vr(FK)}, 4, {vr(T0)}
    v_lshl_add_u32 {vr(FK)}, {vr(T1)}, 12, {vr(FK)}
    v_lshlrev_b32 {vr(FKB)}, 3, {vr(T0)}
    v_lshl_add_u32 {vr(FKB)}, {vr(T1)}, 11, {vr(FKB)}
    v_add_u32 {vr(FKB)}, {KB0}, {vr(FKB)}
    s_mov_b32 s3, 8
    """)
    a.label("L_fb_tile")
    k_reads(a, 0, 0, FK, FKB)
    a("s_waitcnt lgkmcnt(0)")
    for i in range(4):
        m, t = KF[0]
        a(f"v_mfma_f32_32x32x8_bf16 {vr(S[i],16)}, {vr(t,2)}, {vr(Q[i][1],2)}, 0")
        a(f"v_mfma_f32_32x32x16_bf16 {vr(S[i],16)}, {vr(m,4)}, {vr(Q[i][0],4)}, {vr(S[i],16)}")
    a("s_nop 7\ns_nop 7")
    for i in range(4):
        for r in range(0, 16, 2):
            a(f"v_max3_f32 {vr(MX[i])}, {vr(S[i]+r)}, {vr(S[i]+r+1)}, {vr(MX[i])}")
    a(f"""
    v_add_u32 {vr(FK)}, 512, {vr(FK)}
    v_add_u32 {vr(FKB)}, 256, {vr(FKB)}
    s_sub_u32 s3, s3, 1
    s_cmp_lg_u32 s3, 0
    s_cbranch_scc1 L_fb_tile
    s_barrier
    s_add_u32 s{S_GOFF}, s{S_GOFF}, {CH*40}
    s_sub_u32 s{S_CNT}, s{S_CNT}, 1
    s_cmp_lg_u32 s{S_CNT}, 0
    s_cbranch_scc1 L_fb_chunk
    v_lshrrev_b32 {vr(T3)}, 5, {vr(V_LANE)}
    v_cmp_ne_u32 vcc, 0, {vr(T3)}
    """)
    for i in range(4):
        Ox, Qt = MX[i], Q[i][1]
        a(f"""
        v_mov_b32 {vr(T1)}, {vr(Ox)}
        s_nop 1
        v_permlane32_swap_b32 {vr(Ox)}, {vr(T1)}
        s_nop 1
        v_max_f32 {vr(T0)}, {vr(Ox)}, {vr(T1)}
        v_sub_f32 {vr(T0)}, 0, {vr(T0)}
        v_cvt_pk_bf16_f32 {vr(T1)}, {vr(T0)}, 0
        v_lshlrev_b32 {vr(T2)}, 16, {vr(T1)}
        v_sub_f32 {vr(T2)}, {vr(T0)}, {vr(T2)}
        v_cvt_pk_bf16_f32 {vr(T1)}, {vr(T0)}, {vr(T2)}
        v_cndmask_b32 {vr(Qt)}, {vr(Qt)}, {vr(T1)}, vcc
        v_mov_b32 {vr(Ox)}, 0
        """)
    a(f"s_mov_b32 s{S_GOFF}, 0")
    emit_stage_loads(a)
    emit_stage_write(a, 0)
    a(f"s_mov_b32 s{S_GOFF}, {CH*40}")
    emit_stage_loads(a)
    a(f"""
    s_waitcnt lgkmcnt(0)
    s_barrier
    s_branch L_frags
    """)
    ftr = f"""
.section .rodata,"a"
.p2align 6
.amdhsa_kernel {name}
  .amdhsa_next_free_vgpr {NV}
  .amdhsa_next_free_sgpr 102
  .amdhsa_accum_offset {NV}
  .amdhsa_group_segment_fixed_size 0
  .amdhsa_kernarg_size 56
  .amdhsa_user_sgpr_count 2
  .amdhsa_user_sgpr_kernarg_segment_ptr 1
  .amdhsa_system_sgpr_workgroup_id_x 1
.end_amdhsa_kernel
"""
    return hdr + a.text() + ftr

if __name__ == "__main__":
    av = [x for x in sys.argv[1:] if not x.startswith("--")]
    out = av[0] if av else "v2.s"
    open(out, "w").write(gen())
```

```python
import sys

class Asm:
    def __init__(self):
        self.l = []
    def __call__(self, s):
        for x in s.strip("\n").split("\n"):
            x = x.strip()
            if x:
                self.l.append("  " + x)
    def label(self, s):
        self.l.append(s + ":")
    def c(self, s):
        self.l.append("  ; " + s)
    def text(self):
        return "\n".join(self.l) + "\n"

def vr(a, n=1):
    return f"v{a}" if n == 1 else f"v[{a}:{a+n-1}]"

class R:
    def __init__(self, kind, idx):
        self.kind, self.idx = kind, idx
    def r(self, n=1, off=0):
        a = self.idx + off
        return f"{self.kind}{a}" if n == 1 else f"{self.kind}[{a}:{a+n-1}]"
    def o(self, off):
        return R(self.kind, self.idx + off)

OPT = {}
for _x in sys.argv[1:]:
    if _x.startswith("--"):
        k, _, v = _x[2:].partition("=")
        OPT[k] = v if v else "1"
def opt(k, d=None): return OPT.get(k, d)

CH = 256
NCH = 2048 // CH
KA0, KA1, KB0, KB1, VOFF = 0, 4096, 8192, 10240, 12288
BUF = 24576
XR = 2 * BUF
QA0, QA1, QB0, QB1 = XR, XR + 8192, XR + 16384, XR + 20480
RSLOT = 6656
LDS = XR + 8 * RSLOT
HEADB = 2048 * 40
V_TID, V_LANE = 0, 1
V_KADDR, V_KBADDR, V_VADDR = 2, 3, 4
V_KL, V_KBL, V_VL = 5, 6, 7
V_GOFF, V_WL, V_WL2, V_WA, V_WA2 = 8, 9, 10, 11, 12
V_BIAS = 13
T0, T1, T2, T3 = 14, 15, 16, 17
V_IDX = 18
V_ZERO = 19
V_QA01, V_QA23, V_QB01, V_QB23 = 20, 21, 22, 23
V_SND, V_SND4, V_RCV, V_RCV4, V_ST16, V_ST8 = 24, 25, 26, 27, 28, 29
V_Z2 = 30
SB = 32
S = [SB, SB + 16, SB + 32, SB + 48]
AG = opt("agpr", "")
_v = SB + 64
_a = 0
def alloc(n, kind):
    global _v, _a
    if kind == "a":
        r = R("a", _a); _a += n
    else:
        r = R("v", _v); _v += n
    return r
ST = alloc(10, "v").idx
SU = alloc(20, "v").idx
_v = (_v + 3) // 4 * 4
O = [alloc(16, "a" if "O" in AG else "v") for _ in range(4)]
Q = []
for _i in range(4):
    _m = alloc(4, "a" if "Q" in AG else "v"); _t = alloc(2, "a" if "Q" in AG else "v")
    Q.append((_m, _t))
KF = []
for _i in range(2):
    _m = alloc(4, "a" if "K" in AG else "v"); _t = alloc(2, "a" if "K" in AG else "v")
    KF.append((_m, _t))
VF = [alloc(8, "a" if "V" in AG else "v") for _ in range(2)]
ACC_OFF = (_v + 3) // 4 * 4
NV = ACC_OFF + _a
assert NV <= 256, NV

S_WAVE, S_ROLE, S_BH, S_QB = 32, 33, 30, 31
S_RN = 42
S_GOFF = 43
S_CNT = 44
S_T = 34
S_QROW = 50
SRD_K, SRD_V, SRD_Q, SRD_O, SRD_S = 8, 12, 4, 16, 36

LOG2E = 0x3fb8aa3b
STG_M = int(opt("stgm", "1"))
STG_I = int(opt("stgi", "1"))

def norm_row(a, RAW, UN, scale=None):
    a(f"v_dot2_f32_bf16 {vr(T0)}, {vr(RAW)}, {vr(RAW)}, 0")
    a(f"v_dot2_f32_bf16 {vr(T1)}, {vr(RAW+1)}, {vr(RAW+1)}, 0")
    for i in range(2, 10, 2):
        a(f"v_dot2_f32_bf16 {vr(T0)}, {vr(RAW+i)}, {vr(RAW+i)}, {vr(T0)}")
        a(f"v_dot2_f32_bf16 {vr(T1)}, {vr(RAW+i+1)}, {vr(RAW+i+1)}, {vr(T1)}")
    for i in range(2):
        a(f"v_lshlrev_b32 {vr(UN+2*i)}, 16, {vr(RAW+i)}")
        a(f"v_and_b32 {vr(UN+2*i+1)}, 0xffff0000, {vr(RAW+i)}")
    a(f"v_add_f32 {vr(T0)}, {vr(T0)}, {vr(T1)}")
    a(f"v_sqrt_f32 {vr(T0)}, {vr(T0)}")
    for i in range(2, 5):
        a(f"v_lshlrev_b32 {vr(UN+2*i)}, 16, {vr(RAW+i)}")
        a(f"v_and_b32 {vr(UN+2*i+1)}, 0xffff0000, {vr(RAW+i)}")
    a(f"v_add_f32 {vr(T0)}, 0x358637bd, {vr(T0)}")
    a(f"v_rcp_f32 {vr(T2)}, {vr(T0)}")
    for i in range(5, 10):
        a(f"v_lshlrev_b32 {vr(UN+2*i)}, 16, {vr(RAW+i)}")
        a(f"v_and_b32 {vr(UN+2*i+1)}, 0xffff0000, {vr(RAW+i)}")
    if scale is not None:
        a(f"v_mul_f32 {vr(T2)}, {vr(T2)}, {vr(scale)}")
        a("s_nop 0")
    for i in range(10):
        a(f"v_pk_mul_f32 {vr(UN+2*i,2)}, {vr(UN+2*i,2)}, {vr(T2,2)} op_sel_hi:[1,0]")
    for i in range(10):
        a(f"v_cvt_pk_bf16_f32 {vr(RAW+i)}, {vr(UN+2*i)}, {vr(UN+2*i+1)}")

def emit_stage_compute_K(a):
    norm_row(a, ST, SU)
    a(f"ds_write_b128 {vr(V_WA)}, {vr(ST,4)} offset:{KA0}")
    a(f"ds_write_b128 {vr(V_WA)}, {vr(ST+4,4)} offset:{KA1}")
    a(f"ds_write_b64 {vr(V_WA2)}, {vr(ST+8,2)} offset:{KB0}")

def emit_stage_compute_V(a):
    a(f"ds_write_b128 {vr(V_WA)}, {vr(ST,4)} offset:{VOFF}")
    a(f"ds_write_b128 {vr(V_WA)}, {vr(ST+4,4)} offset:{VOFF+16}")
    a(f"ds_write_b64 {vr(V_WA)}, {vr(ST+8,2)} offset:{VOFF+32}")

def emit_stage_loads(a):
    a(f"buffer_load_dwordx4 {vr(ST,4)}, {vr(V_GOFF)}, s[{SRD_S}:{SRD_S+3}], s{S_GOFF} offen")
    a(f"buffer_load_dwordx4 {vr(ST+4,4)}, {vr(V_GOFF)}, s[{SRD_S}:{SRD_S+3}], s{S_GOFF} offen offset:16")
    a(f"buffer_load_dwordx2 {vr(ST+8,2)}, {vr(V_GOFF)}, s[{SRD_S}:{SRD_S+3}], s{S_GOFF} offen offset:32")

uid = [0]
def emit_stage_write(a, wb, vm=0):
    uid[0] += 1
    u = uid[0]
    a(f"v_add_u32 {vr(V_WA)}, {wb}, {vr(V_WL)}")
    a(f"v_add_u32 {vr(V_WA2)}, {wb}, {vr(V_WL2)}")
    a(f"s_waitcnt vmcnt({vm})")
    a(f"s_cmp_lg_u32 s{S_ROLE}, 0")
    a(f"s_cbranch_scc1 L_stV{u}")
    emit_stage_compute_K(a)
    a(f"s_branch L_stE{u}")
    a.label(f"L_stV{u}")
    emit_stage_compute_V(a)
    a.label(f"L_stE{u}")

def k_reads(a, buf, m, ka=V_KADDR, kb=V_KBADDR, stride=2):
    mm, t = KF[buf]
    a(f"ds_read_b128 {mm.r(4)}, {vr(ka)} offset:{m*512*stride}")
    a(f"ds_read_b64 {t.r(2)}, {vr(kb)} offset:{m*256*stride}")

def v_reads(a, buf, m):
    for j in range(2):
        for half in range(2):
            off = (m*64 + 16*j + 4*half) * 48
            a(f"ds_read_b64_tr_b16 {VF[buf].r(2, 4*j + 2*half)}, {vr(V_VADDR)} offset:{off}")

def q_reads(a, i):
    Qm, Qt = Q[i]
    am, at = (V_QA01, V_QB01) if i < 2 else (V_QA23, V_QB23)
    a(f"ds_read_b128 {Qm.r(4)}, {vr(am)} offset:{(i & 1) * 512}")
    a(f"ds_read_b64 {Qt.r(2)}, {vr(at)} offset:{(i & 1) * 256}")

def qk(Sx, kbuf, qi):
    m, t = KF[kbuf]
    Qm, Qt = Q[qi]
    return [f"v_mfma_f32_32x32x8_bf16 {vr(Sx,16)}, {t.r(2)}, {Qt.r(2)}, 0",
            f"v_mfma_f32_32x32x16_bf16 {vr(Sx,16)}, {m.r(4)}, {Qm.r(4)}, {vr(Sx,16)}"]

def pv(Ox, vbuf, Sx):
    return [f"v_smfmac_f32_32x32x32_bf16 {Ox.r(16)}, {VF[vbuf].r(4, 4*j)}, {vr(Sx+8*j,8)}, {vr(V_IDX)}" for j in range(2)]

def phase(a, Sx, mfmas, hooks=None):
    n = len(mfmas)
    per = [16 // n + (1 if i < 16 % n else 0) for i in range(n)]
    e = 0
    for g in range(n):
        a(mfmas[g])
        for _ in range(per[g]):
            if hooks and e in hooks:
                for x in hooks[e]: a(x)
            a(f"v_exp_f32 {vr(Sx+e)}, {vr(Sx+e)}")
            e += 1

DBG4 = bool(opt("dbg4"))
DBG2 = bool(opt("dbg2")) or bool(opt("dbg3"))
def ts(a, i):
    if DBG2:
        a(f"s_memtime s[{60+2*i}:{61+2*i}]")
        a(f"s_memrealtime s[{74+2*i}:{75+2*i}]")

def t4(a, first=False):
    if not DBG4: return
    uid[0] += 1
    u = uid[0]
    if not first:
        a("s_memtime s[64:65]\ns_memrealtime s[66:67]")
    a(f"""
    s_waitcnt lgkmcnt(0)
    s_cmp_lg_u32 s{S_WAVE}, 0
    s_cbranch_scc1 L_t4_{u}
    v_mov_b32 {vr(T0)}, s64
    v_mov_b32 {vr(T1)}, s66
    v_mov_b32 {vr(T2)}, s68
    s_mov_b64 exec, 1
    global_store_dwordx2 {vr(T2)}, {vr(T0,2)}, s[58:59]
    s_mov_b64 exec, -1
    s_nop 4
    """)
    a.label(f"L_t4_{u}")
    a("s_add_u32 s68, s68, 8")

DBG3 = bool(opt("dbg3"))
def t3(a, k):
    if DBG3:
        a(f"s_memtime s[{80+2*k}:{81+2*k}]")

def zero16(a, Rx):
    a(f"v_mfma_f32_32x32x8_bf16 {Rx.r(16)}, {vr(V_Z2,2)}, {vr(V_Z2,2)}, 0")

def send(ti):
    o = ti * 3328
    l = [f"ds_write_b128 {vr(V_SND)}, {O[ti].r(4, 4*k)} offset:{o + 1024*k}" for k in range(3)]
    l.append(f"ds_write_b32 {vr(V_SND4)}, {O[ti].r(1, 12)} offset:{o + 3072}")
    return l

def recv(ti):
    o = ti * 3328
    l = [f"ds_read_b128 {vr(S[ti]+4*k,4)}, {vr(V_RCV)} offset:{o + 1024*k}" for k in range(3)]
    l.append(f"ds_read_b32 {vr(S[ti]+12)}, {vr(V_RCV4)} offset:{o + 3072}")
    return l

def finalize(a, ti):
    Ox = O[2 + ti]
    P = S[ti]
    if Ox.kind == "a":
        for i in range(13):
            a(f"v_accvgpr_read_b32 {vr(SU+i)}, {Ox.r(1, i)}")
        src = lambda i, n=1: vr(SU + i, n)
    else:
        src = lambda i, n=1: Ox.r(n, i)
    a(f"v_add_f32 {vr(T2)}, {src(12)}, {vr(P+12)}")
    a(f"v_rcp_f32 {vr(T2)}, {vr(T2)}")
    for i in range(0, 12, 2):
        a(f"v_pk_add_f32 {vr(P+i,2)}, {vr(P+i,2)}, {src(i,2)}")
    for i in range(0, 12, 2):
        a(f"v_pk_mul_f32 {vr(P+i,2)}, {vr(P+i,2)}, {vr(T2,2)} op_sel_hi:[1,0]")
    for i in range(6):
        a(f"v_cvt_pk_bf16_f32 {vr(P+i)}, {vr(P+2*i)}, {vr(P+2*i+1)}")
    a("s_nop 1")
    a(f"v_permlane32_swap_b32 {vr(P)}, {vr(P+2)}")
    a(f"v_permlane32_swap_b32 {vr(P+1)}, {vr(P+3)}")
    a("s_nop 1")
    o = ti*32*40
    a(f"buffer_store_dwordx4 {vr(P,4)}, {vr(V_ST16)}, s[{SRD_O}:{SRD_O+3}], 0 offen offset:{o}")
    a(f"buffer_store_dwordx2 {vr(P+4,2)}, {vr(V_ST8)}, s[{SRD_O}:{SRD_O+3}], 0 offen offset:{o+32}")

def gen():
    a = Asm()
    dbg_head = "s_memtime s[60:61]\ns_memrealtime s[70:71]\ns_load_dwordx2 s[58:59], s[0:1], 48" if DBG2 else ""
    if DBG4:
        dbg_head = "s_memtime s[64:65]\ns_memrealtime s[66:67]\ns_load_dwordx2 s[58:59], s[0:1], 48\ns_lshl_b32 s68, s2, 8"
    name = "standalone__qk_norm__prompt_kernel"
    hdr = f"""; qk-norm attention, hand-written generator (gen/gen3.py)
; @launch grid=(256,1,1) block=(512,1,1) lds={LDS}
.amdgcn_target "amdgcn-amd-amdhsa--gfx950"
.text
.globl {name}
.p2align 8
.type {name},@function
{name}:
"""
    QR = S[0]
    QU = S[1]
    V_QOFF = T3
    a(f"""
    s_cmp_ge_u32 s2, 256
    s_cbranch_scc1 L_end
    {dbg_head}
    s_load_dwordx4 s[20:23], s[0:1], 0
    s_load_dwordx4 s[24:27], s[0:1], 16
    s_load_dwordx2 s[28:29], s[0:1], 32
    s_and_b32 s{S_BH}, s2, 7
    s_lshr_b32 s3, s2, 5
    s_lshl_b32 s3, s3, 3
    s_add_u32 s{S_BH}, s{S_BH}, s3
    s_lshr_b32 s{S_QB}, s2, 3
    s_and_b32 s{S_QB}, s{S_QB}, 3
    v_and_b32 {vr(V_LANE)}, 63, {vr(V_TID)}
    v_lshrrev_b32 {vr(T0)}, 6, {vr(V_TID)}
    s_mul_i32 s35, s{S_BH}, {HEADB}
    v_readfirstlane_b32 s{S_WAVE}, {vr(T0)}
    s_mul_i32 s45, s{S_QB}, {512*40}
    s_add_u32 s45, s45, s35
    s_and_b32 s46, s{S_BH}, 31
    s_lshl_b32 s46, s46, 1
    s_and_b32 s47, s46, 0x7c
    s_lshr_b32 s{S_ROLE}, s{S_WAVE}, 2
    s_and_b32 s51, s{S_WAVE}, 3
    s_lshl_b32 s51, s51, 7
    s_lshl_b32 s{S_QROW}, s{S_ROLE}, 6
    s_add_u32 s{S_QROW}, s{S_QROW}, s51
    v_and_b32 {vr(T2)}, 255, {vr(V_TID)}
    v_mul_u32_u24 {vr(V_GOFF)}, 40, {vr(T2)}
    v_mul_u32_u24 {vr(V_QOFF)}, 40, {vr(V_TID)}
    s_mov_b32 s{S_GOFF}, 0
    s_waitcnt lgkmcnt(0)
    {"s_memtime s[80:81]" if DBG3 else ""}
    s_load_dword s{S_T}, s[26:27], s47
    s_add_u32 s{SRD_K}, s22, s35
    s_addc_u32 s{SRD_K+1}, s23, 0
    s_add_u32 s{SRD_V}, s24, s35
    s_addc_u32 s{SRD_V+1}, s25, 0
    s_cmp_eq_u32 s{S_ROLE}, 0
    s_cselect_b32 s{SRD_S}, s{SRD_K}, s{SRD_V}
    s_cselect_b32 s{SRD_S+1}, s{SRD_K+1}, s{SRD_V+1}
    s_mov_b32 s{SRD_S+2}, {HEADB}
    s_mov_b32 s{SRD_S+3}, 0x00020000
    s_add_u32 s{SRD_Q}, s20, s45
    s_addc_u32 s{SRD_Q+1}, s21, 0
    s_mov_b32 s{SRD_Q+2}, {512*40}
    s_mov_b32 s{SRD_Q+3}, 0x00020000
    """)
    emit_stage_loads(a)
    t4(a, first=True)
    a(f"""
    buffer_load_dwordx4 {vr(QR,4)}, {vr(V_QOFF)}, s[{SRD_Q}:{SRD_Q+3}], 0 offen
    buffer_load_dwordx4 {vr(QR+4,4)}, {vr(V_QOFF)}, s[{SRD_Q}:{SRD_Q+3}], 0 offen offset:16
    buffer_load_dwordx2 {vr(QR+8,2)}, {vr(V_QOFF)}, s[{SRD_Q}:{SRD_Q+3}], 0 offen offset:32
    s_add_u32 s{SRD_O}, s28, s45
    s_addc_u32 s{SRD_O+1}, s29, 0
    s_mov_b32 s{SRD_O+2}, {512*40}
    s_mov_b32 s{SRD_O+3}, 0x00020000
    """)
    a(f"""
    s_cmp_eq_u32 s{S_ROLE}, 0
    s_cselect_b32 s3, 16, 48
    v_mul_u32_u24 {vr(V_WL)}, s3, {vr(T2)}
    v_lshlrev_b32 {vr(V_WL2)}, 3, {vr(T2)}
    """)
    a.c("LDS constants: K role writes KB1 plane [1,1,0,0]; V role writes ones chunk [1,0,0,0] at +40")
    a(f"""
    s_mov_b32 s49, 0x3f803f80
    s_mov_b32 s48, 0x00003f80
    s_cselect_b32 s3, s49, s48
    v_mov_b32 {vr(SU+2)}, s3
    v_mov_b32 {vr(SU+3)}, 0
    s_mov_b32 s48, {KB1}
    s_mov_b32 s49, {VOFF+40}
    s_cselect_b32 s3, s48, s49
    v_mov_b32 {vr(SU+4)}, s3
    v_add_u32 {vr(SU+5)}, {vr(SU+4)}, {vr(V_WL)}
    v_add_u32 {vr(SU+4)}, {vr(SU+4)}, {vr(V_WL2)}
    s_cselect_b64 vcc, -1, 0
    v_cndmask_b32 {vr(SU+4)}, {vr(SU+5)}, {vr(SU+4)}, vcc
    v_mov_b32 {vr(V_Z2)}, 0
    v_mov_b32 {vr(V_Z2+1)}, 0
    """)
    for b in range(2):
        a(f"ds_write_b64 {vr(SU+4)}, {vr(SU+2,2)} offset:{b*BUF}")
    a.c("zero accumulators via MFMA")
    a("s_nop 1")
    for o in O:
        zero16(a, o)
    zero16(a, R("v", S[3]))
    for i in range(8):
        if VF[1].kind == "a":
            a(f"v_accvgpr_write_b32 {VF[1].r(1, i)}, 0")
        else:
            a(f"v_mov_b32 {VF[1].r(1, i)}, 0")
    a.c("read lane parts (T0 = n, T1 = h)")
    a(f"""
    v_and_b32 {vr(T0)}, 31, {vr(V_LANE)}
    v_lshrrev_b32 {vr(T1)}, 5, {vr(V_LANE)}
    s_lshl_b32 s3, s{S_ROLE}, 9
    v_lshlrev_b32 {vr(V_KL)}, 4, {vr(T0)}
    v_lshl_add_u32 {vr(V_KL)}, {vr(T1)}, 12, {vr(V_KL)}
    v_add_u32 {vr(V_KL)}, s3, {vr(V_KL)}
    s_lshl_b32 s3, s{S_ROLE}, 8
    s_add_u32 s3, s3, {KB0}
    v_lshlrev_b32 {vr(V_KBL)}, 3, {vr(T0)}
    v_lshl_add_u32 {vr(V_KBL)}, {vr(T1)}, 11, {vr(V_KBL)}
    v_add_u32 {vr(V_KBL)}, s3, {vr(V_KBL)}
    """)
    a(f"""
    v_add_u32 {vr(SU+6)}, s{S_QROW}, {vr(T0)}
    s_xor_b32 s3, s{S_QROW}, 64
    v_add_u32 {vr(SU+7)}, s3, {vr(T0)}
    v_lshlrev_b32 {vr(SU+8)}, 13, {vr(T1)}
    v_add_u32 {vr(SU+8)}, {QA0}, {vr(SU+8)}
    v_lshlrev_b32 {vr(SU+9)}, 12, {vr(T1)}
    v_add_u32 {vr(SU+9)}, {QB0}, {vr(SU+9)}
    v_lshl_add_u32 {vr(V_QA23)}, {vr(SU+6)}, 4, {vr(SU+8)}
    v_lshl_add_u32 {vr(V_QA01)}, {vr(SU+7)}, 4, {vr(SU+8)}
    v_lshl_add_u32 {vr(V_QB23)}, {vr(SU+6)}, 3, {vr(SU+9)}
    v_lshl_add_u32 {vr(V_QB01)}, {vr(SU+7)}, 3, {vr(SU+9)}
    """)
    a(f"""
    v_mul_u32_u24 {vr(SU+6)}, 40, {vr(SU+6)}
    v_lshl_add_u32 {vr(V_ST16)}, {vr(T1)}, 4, {vr(SU+6)}
    v_lshl_add_u32 {vr(V_ST8)}, {vr(T1)}, 24, {vr(SU+6)}
    s_mul_i32 s3, s{S_WAVE}, {RSLOT}
    s_add_u32 s3, s3, {XR}
    v_lshlrev_b32 {vr(SU+6)}, 4, {vr(V_LANE)}
    v_lshlrev_b32 {vr(SU+7)}, 2, {vr(V_LANE)}
    v_add_u32 {vr(V_SND)}, s3, {vr(SU+6)}
    v_add_u32 {vr(V_SND4)}, s3, {vr(SU+7)}
    s_xor_b32 s3, s{S_WAVE}, 4
    s_mul_i32 s3, s3, {RSLOT}
    s_add_u32 s3, s3, {XR}
    v_add_u32 {vr(V_RCV)}, s3, {vr(SU+6)}
    v_add_u32 {vr(V_RCV4)}, s3, {vr(SU+7)}
    """)
    a(f"""
    v_bfe_u32 {vr(T2)}, {vr(V_LANE)}, 2, 2
    v_lshl_add_u32 {vr(T2)}, {vr(T1)}, 3, {vr(T2)}
    v_mul_u32_u24 {vr(V_VL)}, 48, {vr(T2)}
    v_and_b32 {vr(T2)}, 3, {vr(V_LANE)}
    v_min_u32 {vr(SU+6)}, 1, {vr(T2)}
    v_add_u32 {vr(SU+6)}, 4, {vr(SU+6)}
    v_and_b32 {vr(SU+7)}, 16, {vr(V_LANE)}
    v_cmp_ne_u32 vcc, 0, {vr(SU+7)}
    s_mul_i32 s3, s{S_ROLE}, 1536
    s_add_u32 s3, s3, {VOFF}
    v_cndmask_b32 {vr(T2)}, {vr(T2)}, {vr(SU+6)}, vcc
    v_lshl_add_u32 {vr(V_VL)}, {vr(T2)}, 3, {vr(V_VL)}
    v_add_u32 {vr(V_VL)}, s3, {vr(V_VL)}
    v_mov_b32 {vr(V_IDX)}, 0xdddd
    v_mov_b32 {vr(V_KADDR)}, {vr(V_KL)}
    v_mov_b32 {vr(V_KBADDR)}, {vr(V_KBL)}
    v_mov_b32 {vr(V_VADDR)}, {vr(V_VL)}
    """)
    a.c("t -> scale (T3) and bias (V_BIAS, zero in V_ZERO... pair at V_BIAS2)")
    a(f"""
    s_waitcnt lgkmcnt(0)
    s_and_b32 s46, s46, 2
    s_lshl_b32 s46, s46, 3
    s_lshr_b32 s{S_T}, s{S_T}, s46
    s_lshl_b32 s{S_T}, s{S_T}, 16
    v_mov_b32 {vr(T3)}, s{S_T}
    v_mul_f32 {vr(T3)}, 0x{LOG2E:08x}, {vr(T3)}
    """)
    BP = S[2] + 8
    a(f"""
    v_or_b32 {vr(BP)}, 0x80000000, {vr(T3)}
    v_cvt_pk_bf16_f32 {vr(BP)}, {vr(BP)}, 0
    v_mov_b32 {vr(BP+1)}, 0
    """)
    a.c("stage chunk 0 into buffer 0")
    t3(a, 1)
    emit_stage_write(a, 0, vm=3)
    t3(a, 2)
    a.c("Q normalisation: thread tid -> row tid, planes in XR")
    a(f"""
    v_lshlrev_b32 {vr(V_WA)}, 4, {vr(V_TID)}
    v_lshlrev_b32 {vr(V_WA2)}, 3, {vr(V_TID)}
    v_add_u32 {vr(V_WA2)}, {QB0}, {vr(V_WA2)}
    s_waitcnt vmcnt(0)
    """)
    t3(a, 3)
    a(f"s_mov_b32 s{S_GOFF}, {CH*40}")
    emit_stage_loads(a)
    norm_row(a, QR, QU, scale=T3)
    a(f"""
    ds_write_b128 {vr(V_WA)}, {vr(QR,4)} offset:{QA0}
    ds_write_b128 {vr(V_WA)}, {vr(QR+4,4)} offset:{QA1}
    ds_write_b64 {vr(V_WA2)}, {vr(QR+8,2)}
    ds_write_b64 {vr(V_WA2)}, {vr(BP,2)} offset:{QB1-QB0}
    """)
    t3(a, 4)
    a(f"""
    s_and_b32 s3, s{S_T}, 0x7fffffff
    s_mov_b32 s{S_RN}, {BUF}
    s_mov_b32 s{S_CNT}, {NCH}
    s_waitcnt lgkmcnt(0)
    """)
    t3(a, 5)
    a(f"""
    s_barrier
    {"s_memtime s[92:93]" if DBG3 else ""}
    s_cmp_gt_u32 s3, 0x41800000
    s_cbranch_scc1 L_fallback
    """)
    a.label("L_go")
    k_reads(a, 0, 0)
    q_reads(a, 0)
    q_reads(a, 1)
    v_reads(a, 0, 0)
    q_reads(a, 2)
    q_reads(a, 3)
    a("s_waitcnt lgkmcnt(10)")
    for m in qk(S[0], 0, 0): a(m)
    a("s_waitcnt lgkmcnt(8)")
    for m in qk(S[1], 0, 1): a(m)
    a("s_nop 7")
    ts(a, 1)
    if opt("align"):
        a(f".p2align {opt('align')}")
    a.label("L_loop")
    for m in range(4):
        for i in range(4):
            if i == 0:
                if m in (0, 2): t4(a)
                a("s_waitcnt lgkmcnt(0)")
                if m == 3:
                    a(f"s_cmp_eq_u32 s{S_CNT}, 1")
                    if opt("nolastbar"):
                        a("s_cbranch_scc1 L_tail")
                        a("s_barrier")
                    else:
                        a("s_barrier")
                        a("s_cbranch_scc1 L_tail")
                    a(f"v_add_u32 {vr(V_KADDR)}, s{S_RN}, {vr(V_KL)}")
                    a(f"v_add_u32 {vr(V_KBADDR)}, s{S_RN}, {vr(V_KBL)}")
                k_reads(a, (m+1) % 2, (m+1) % 4)
            if i == 2:
                a("s_waitcnt lgkmcnt(0)")
                if m == 3:
                    a(f"v_add_u32 {vr(V_VADDR)}, s{S_RN}, {vr(V_VL)}")
                v_reads(a, (m+1) % 2, (m+1) % 4)
            if m == STG_M and i == STG_I:
                u = "L_skipst"
                a(f"s_cmp_eq_u32 s{S_CNT}, 1")
                a(f"s_cbranch_scc1 {u}")
                emit_stage_write(a, f"s{S_RN}")
                a(f"s_add_u32 s{S_GOFF}, s{S_GOFF}, {CH*40}")
                a(f"s_cmp_eq_u32 s{S_CNT}, 2")
                a(f"s_cbranch_scc1 {u}")
                emit_stage_loads(a)
                a.label(u)
            P = pv(O[(i-1) % 4], (m-1) % 2 if i == 0 else m % 2, S[(i-1) % 4])
            Qk = qk(S[(i+2) % 4], (m+1) % 2 if i >= 2 else m % 2, (i+2) % 4)
            phase(a, S[i], P + Qk)
    a(f"""
    s_xor_b32 s{S_RN}, s{S_RN}, {BUF}
    s_sub_u32 s{S_CNT}, s{S_CNT}, 1
    s_branch L_loop
    """)
    a.label("L_tail")
    ts(a, 2)
    m = 3
    phase(a, S[0], pv(O[3], 0, S[3]) + qk(S[2], 1, 2))
    phase(a, S[1], pv(O[0], 1, S[0]) + qk(S[3], 1, 3))
    phase(a, S[2], pv(O[1], 1, S[1]), hooks={4: send(0)})
    hb = ["s_waitcnt lgkmcnt(0)"]
    if DBG3: hb.append("s_memtime s[94:95]")
    hb.append("s_barrier")
    if DBG3: hb.append("s_memtime s[96:97]")
    hb += recv(0) + recv(1)
    phase(a, S[3], pv(O[2], 1, S[2]), hooks={2: send(1), 12: hb})
    a("s_nop 1")
    for x in pv(O[3], 1, S[3]): a(x)
    a("s_waitcnt lgkmcnt(4)")
    finalize(a, 0)
    a("s_waitcnt lgkmcnt(0)")
    a("s_nop 3")
    finalize(a, 1)
    t3(a, 9)
    t4(a)
    if DBG3:
        a(f"""
        s_waitcnt vmcnt(0)
        s_memtime s[66:67]
        s_waitcnt lgkmcnt(0)
        s_and_b32 s3, s{S_WAVE}, 3
        s_cmp_lg_u32 s3, 0
        s_cbranch_scc1 L_end
        s_lshl_b32 s3, s2, 7
        s_lshl_b32 s4, s{S_ROLE}, 6
        s_add_u32 s3, s3, s4
        v_mov_b32 v0, s3
        v_mov_b32 v2, s60
        v_mov_b32 v3, s80
        v_mov_b32 v4, s82
        v_mov_b32 v5, s84
        v_mov_b32 v6, s86
        v_mov_b32 v7, s88
        v_mov_b32 v8, s90
        v_mov_b32 v9, s92
        v_mov_b32 v10, s62
        v_mov_b32 v11, s64
        v_mov_b32 v12, s94
        v_mov_b32 v13, s96
        v_mov_b32 v14, s98
        v_mov_b32 v15, s66
        v_mov_b32 v16, 0
        v_mov_b32 v17, 0
        s_mov_b64 exec, 1
        global_store_dwordx4 v0, v[2:5], s[58:59]
        global_store_dwordx4 v0, v[6:9], s[58:59] offset:16
        global_store_dwordx4 v0, v[10:13], s[58:59] offset:32
        global_store_dwordx4 v0, v[14:17], s[58:59] offset:48
        """)
    elif DBG2:
        a(f"""
        s_waitcnt vmcnt(0)
        s_memtime s[66:67]
        s_memrealtime s[72:73]
        s_waitcnt lgkmcnt(0)
        s_cmp_lg_u32 s{S_WAVE}, 0
        s_cbranch_scc1 L_end
        s_lshl_b32 s3, s2, 5
        v_mov_b32 v0, s3
        v_mov_b32 v2, s60
        v_mov_b32 v3, s62
        v_mov_b32 v4, s64
        v_mov_b32 v5, s66
        v_mov_b32 v6, s70
        v_mov_b32 v7, s72
        v_mov_b32 v8, s76
        v_mov_b32 v9, s78
        s_mov_b64 exec, 1
        global_store_dwordx4 v0, v[2:5], s[58:59]
        global_store_dwordx4 v0, v[6:9], s[58:59] offset:16
        """)
    a.label("L_end")
    a("s_endpgm")
    a.label("L_fallback")
    MX = [V_BIAS, V_ZERO, V_KADDR, V_KBADDR]
    FK, FKB = V_VADDR, T3
    a(f"""
    s_waitcnt vmcnt(0) lgkmcnt(0)
    s_mov_b32 s{S_GOFF}, 0
    """)
    for i in range(4):
        q_reads(a, i)
    for i in range(4):
        a(f"v_mov_b32 {vr(MX[i])}, 0xff800000")
    a("s_waitcnt lgkmcnt(0)")
    a("s_barrier")
    a.label("L_fb_chunk")
    emit_stage_loads(a)
    emit_stage_write(a, 0)
    a(f"""
    s_waitcnt lgkmcnt(0)
    s_barrier
    v_and_b32 {vr(T0)}, 31, {vr(V_LANE)}
    v_lshrrev_b32 {vr(T1)}, 5, {vr(V_LANE)}
    v_lshlrev_b32 {vr(FK)}, 4, {vr(T0)}
    v_lshl_add_u32 {vr(FK)}, {vr(T1)}, 12, {vr(FK)}
    v_lshlrev_b32 {vr(FKB)}, 3, {vr(T0)}
    v_lshl_add_u32 {vr(FKB)}, {vr(T1)}, 11, {vr(FKB)}
    v_add_u32 {vr(FKB)}, {KB0}, {vr(FKB)}
    s_mov_b32 s3, 8
    """)
    a.label("L_fb_tile")
    k_reads(a, 0, 0, FK, FKB)
    a("s_waitcnt lgkmcnt(0)")
    for i in range(4):
        for x in qk(S[i], 0, i): a(x)
    a("s_nop 7\ns_nop 7")
    for i in range(4):
        for r in range(0, 16, 2):
            a(f"v_max3_f32 {vr(MX[i])}, {vr(S[i]+r)}, {vr(S[i]+r+1)}, {vr(MX[i])}")
    a(f"""
    v_add_u32 {vr(FK)}, 512, {vr(FK)}
    v_add_u32 {vr(FKB)}, 256, {vr(FKB)}
    s_sub_u32 s3, s3, 1
    s_cmp_lg_u32 s3, 0
    s_cbranch_scc1 L_fb_tile
    s_barrier
    s_add_u32 s{S_GOFF}, s{S_GOFF}, {CH*40}
    s_sub_u32 s{S_CNT}, s{S_CNT}, 1
    s_cmp_lg_u32 s{S_CNT}, 0
    s_cbranch_scc1 L_fb_chunk
    """)
    a(f"""
    v_lshlrev_b32 {vr(T3)}, 3, {vr(V_TID)}
    v_add_u32 {vr(T3)}, {QB1}, {vr(T3)}
    ds_read_b32 {vr(SU)}, {vr(T3)}
    s_waitcnt lgkmcnt(0)
    v_lshlrev_b32 {vr(SU)}, 16, {vr(SU)}
    s_barrier
    """)
    for i in range(4):
        Ox = MX[i]
        at = V_QB01 if i < 2 else V_QB23
        a(f"""
        v_mov_b32 {vr(T1)}, {vr(Ox)}
        s_nop 1
        v_permlane32_swap_b32 {vr(Ox)}, {vr(T1)}
        s_nop 1
        v_max_f32 {vr(T0)}, {vr(Ox)}, {vr(T1)}
        v_sub_f32 {vr(T0)}, {vr(SU)}, {vr(T0)}
        v_cvt_pk_bf16_f32 {vr(T1)}, {vr(T0)}, 0
        v_lshlrev_b32 {vr(T2)}, 16, {vr(T1)}
        v_sub_f32 {vr(T2)}, {vr(T0)}, {vr(T2)}
        v_cvt_pk_bf16_f32 {vr(SU+2)}, {vr(T0)}, {vr(T2)}
        v_mov_b32 {vr(SU+3)}, 0
        v_or_b32 {vr(SU+4)}, 0x1000, {vr(at)}
        ds_write_b64 {vr(SU+4)}, {vr(SU+2,2)} offset:{(i & 1) * 256}
        """)
    a(f"s_mov_b32 s{S_GOFF}, 0")
    emit_stage_loads(a)
    emit_stage_write(a, 0)
    a(f"s_mov_b32 s{S_GOFF}, {CH*40}")
    emit_stage_loads(a)
    zero16(a, R("v", S[3]))
    a(f"""
    v_mov_b32 {vr(V_KADDR)}, {vr(V_KL)}
    v_mov_b32 {vr(V_KBADDR)}, {vr(V_KBL)}
    v_mov_b32 {vr(V_VADDR)}, {vr(V_VL)}
    s_mov_b32 s{S_CNT}, {NCH}
    s_waitcnt lgkmcnt(0)
    s_barrier
    s_branch L_go
    """)
    ftr = f"""
.section .rodata,"a"
.p2align 6
.amdhsa_kernel {name}
  .amdhsa_next_free_vgpr {NV}
  .amdhsa_next_free_sgpr 102
  .amdhsa_accum_offset {ACC_OFF}
  .amdhsa_group_segment_fixed_size 0
  .amdhsa_kernarg_size 56
  .amdhsa_user_sgpr_count 2
  .amdhsa_user_sgpr_kernarg_segment_ptr 1
  .amdhsa_system_sgpr_workgroup_id_x 1
.end_amdhsa_kernel
"""
    return hdr + a.text() + ftr

if __name__ == "__main__":
    av = [x for x in sys.argv[1:] if not x.startswith("--")]
    out = av[0] if av else "v3.s"
    open(out, "w").write(gen())
```

```python
import sys

class Asm:
    def __init__(self):
        self.l = []
    def __call__(self, s):
        for x in s.strip("\n").split("\n"):
            x = x.strip()
            if x:
                self.l.append("  " + x)
    def label(self, s):
        self.l.append(s + ":")
    def c(self, s):
        self.l.append("  ; " + s)
    def text(self):
        return "\n".join(self.l) + "\n"

def vr(a, n=1):
    return f"v{a}" if n == 1 else f"v[{a}:{a+n-1}]"

class R:
    def __init__(self, kind, idx):
        self.kind, self.idx = kind, idx
    def r(self, n=1, off=0):
        a = self.idx + off
        return f"{self.kind}{a}" if n == 1 else f"{self.kind}[{a}:{a+n-1}]"
    def o(self, off):
        return R(self.kind, self.idx + off)

OPT = {}
for _x in sys.argv[1:]:
    if _x.startswith("--"):
        k, _, v = _x[2:].partition("=")
        OPT[k] = v if v else "1"
def opt(k, d=None): return OPT.get(k, d)

CH = 256
NCH = 2048 // CH
KA0, KA1, KB0, KB1, VOFF = 0, 4096, 8192, 10240, 12288
BUF = 24576
XR = 2 * BUF
QA0, QA1, QB0, QB1 = XR, XR + 8192, XR + 16384, XR + 20480
RSLOT = 6656
LDS = XR + 8 * RSLOT
HEADB = 2048 * 40
V_TID, V_LANE = 0, 1
V_KADDR, V_KBADDR, V_VADDR = 2, 3, 4
V_KL, V_KBL, V_VL = 5, 6, 7
V_GOFF, V_WL, V_WL2, V_WA, V_WA2 = 8, 9, 10, 11, 12
V_QOFF = 13
T0, T1, T2, T3 = 14, 15, 16, 17
V_IDX = 18
V_FB1 = 19
V_QAE, V_QAO, V_QBE, V_QBO = 20, 21, 22, 23
V_SND, V_SND4, V_RCV, V_RCV4, V_ST16, V_ST8 = 24, 25, 26, 27, 28, 29
V_Z2 = 30
SB = 32
S = [SB, SB + 16, SB + 32, SB + 48]
AG = opt("agpr", "")
_v = SB + 64
_a = 0
def alloc(n, kind):
    global _v, _a
    if kind == "a":
        r = R("a", _a); _a += n
    else:
        r = R("v", _v); _v += n
    return r
ST = alloc(10, "v").idx
SU = alloc(20, "v").idx
QR2 = alloc(10, "v").idx
_v = (_v + 3) // 4 * 4
O = [alloc(16, "a" if "O" in AG else "v") for _ in range(4)]
Q = []
for _i in range(4):
    _m = alloc(4, "a" if "Q" in AG else "v"); _t = alloc(2, "a" if "Q" in AG else "v")
    Q.append((_m, _t))
KF = []
for _i in range(2):
    _m = alloc(4, "a" if "K" in AG else "v"); _t = alloc(2, "a" if "K" in AG else "v")
    KF.append((_m, _t))
VF = [alloc(8, "a" if "V" in AG else "v") for _ in range(2)]
ACC_OFF = (_v + 3) // 4 * 4
NV = ACC_OFF + _a
assert NV <= 256, NV

S_WAVE, S_ROLE, S_BH, S_QB = 32, 33, 30, 31
S_RN = 42
S_GOFF = 43
S_CNT = 44
S_T = 34
S_QROW = 50
S_QB0 = 52
SRD_K, SRD_V, SRD_Q, SRD_O, SRD_S = 8, 12, 4, 16, 36

LOG2E = 0x3fb8aa3b
STG_M = int(opt("stgm", "1"))
STG_I = int(opt("stgi", "1"))

def norm_row(a, RAW, UN, scale=None):
    a(f"v_dot2_f32_bf16 {vr(T0)}, {vr(RAW)}, {vr(RAW)}, 0")
    a(f"v_dot2_f32_bf16 {vr(T1)}, {vr(RAW+1)}, {vr(RAW+1)}, 0")
    for i in range(2, 10, 2):
        a(f"v_dot2_f32_bf16 {vr(T0)}, {vr(RAW+i)}, {vr(RAW+i)}, {vr(T0)}")
        a(f"v_dot2_f32_bf16 {vr(T1)}, {vr(RAW+i+1)}, {vr(RAW+i+1)}, {vr(T1)}")
    for i in range(2):
        a(f"v_lshlrev_b32 {vr(UN+2*i)}, 16, {vr(RAW+i)}")
        a(f"v_and_b32 {vr(UN+2*i+1)}, 0xffff0000, {vr(RAW+i)}")
    a(f"v_add_f32 {vr(T0)}, {vr(T0)}, {vr(T1)}")
    a(f"v_sqrt_f32 {vr(T0)}, {vr(T0)}")
    for i in range(2, 5):
        a(f"v_lshlrev_b32 {vr(UN+2*i)}, 16, {vr(RAW+i)}")
        a(f"v_and_b32 {vr(UN+2*i+1)}, 0xffff0000, {vr(RAW+i)}")
    a(f"v_add_f32 {vr(T0)}, 0x358637bd, {vr(T0)}")
    a(f"v_rcp_f32 {vr(T2)}, {vr(T0)}")
    for i in range(5, 10):
        a(f"v_lshlrev_b32 {vr(UN+2*i)}, 16, {vr(RAW+i)}")
        a(f"v_and_b32 {vr(UN+2*i+1)}, 0xffff0000, {vr(RAW+i)}")
    if scale is not None:
        a(f"v_mul_f32 {vr(T2)}, {vr(T2)}, {vr(scale)}")
        a("s_nop 0")
    for i in range(10):
        a(f"v_pk_mul_f32 {vr(UN+2*i,2)}, {vr(UN+2*i,2)}, {vr(T2,2)} op_sel_hi:[1,0]")
    for i in range(10):
        a(f"v_cvt_pk_bf16_f32 {vr(RAW+i)}, {vr(UN+2*i)}, {vr(UN+2*i+1)}")

def emit_stage_compute_K(a):
    norm_row(a, ST, SU)
    a(f"ds_write_b128 {vr(V_WA)}, {vr(ST,4)} offset:{KA0}")
    a(f"ds_write_b128 {vr(V_WA)}, {vr(ST+4,4)} offset:{KA1}")
    a(f"ds_write_b64 {vr(V_WA2)}, {vr(ST+8,2)} offset:{KB0}")

def emit_stage_compute_V(a):
    a(f"ds_write_b128 {vr(V_WA)}, {vr(ST,4)} offset:{VOFF}")
    a(f"ds_write_b128 {vr(V_WA)}, {vr(ST+4,4)} offset:{VOFF+16}")
    a(f"ds_write_b64 {vr(V_WA)}, {vr(ST+8,2)} offset:{VOFF+32}")

def emit_stage_loads(a):
    a(f"buffer_load_dwordx4 {vr(ST,4)}, {vr(V_GOFF)}, s[{SRD_S}:{SRD_S+3}], s{S_GOFF} offen")
    a(f"buffer_load_dwordx4 {vr(ST+4,4)}, {vr(V_GOFF)}, s[{SRD_S}:{SRD_S+3}], s{S_GOFF} offen offset:16")
    a(f"buffer_load_dwordx2 {vr(ST+8,2)}, {vr(V_GOFF)}, s[{SRD_S}:{SRD_S+3}], s{S_GOFF} offen offset:32")

uid = [0]
def emit_stage_write(a, wb, vm=0):
    uid[0] += 1
    u = uid[0]
    a(f"v_add_u32 {vr(V_WA)}, {wb}, {vr(V_WL)}")
    a(f"v_add_u32 {vr(V_WA2)}, {wb}, {vr(V_WL2)}")
    a(f"s_waitcnt vmcnt({vm})")
    a(f"s_cmp_lg_u32 s{S_ROLE}, 0")
    a(f"s_cbranch_scc1 L_stV{u}")
    emit_stage_compute_K(a)
    a(f"s_branch L_stE{u}")
    a.label(f"L_stV{u}")
    emit_stage_compute_V(a)
    a.label(f"L_stE{u}")

def k_reads(a, buf, m, ka=V_KADDR, kb=V_KBADDR, stride=2):
    mm, t = KF[buf]
    a(f"ds_read_b128 {mm.r(4)}, {vr(ka)} offset:{m*512*stride}")
    a(f"ds_read_b64 {t.r(2)}, {vr(kb)} offset:{m*256*stride}")

def v_reads(a, buf, m):
    for j in range(2):
        for half in range(2):
            off = (m*64 + 16*j + 4*half) * 48
            a(f"ds_read_b64_tr_b16 {VF[buf].r(2, 4*j + 2*half)}, {vr(V_VADDR)} offset:{off}")

def q_reads(a, i):
    Qm, Qt = Q[i]
    am, at = (V_QAE, V_QBE) if (i & 1) == 0 else (V_QAO, V_QBO)
    a(f"ds_read_b128 {Qm.r(4)}, {vr(am)} offset:{(i >> 1) * 1024}")
    a(f"ds_read_b64 {Qt.r(2)}, {vr(at)} offset:{(i >> 1) * 512}")

def qk(Sx, kbuf, qi):
    m, t = KF[kbuf]
    Qm, Qt = Q[qi]
    return [f"v_mfma_f32_32x32x8_bf16 {vr(Sx,16)}, {t.r(2)}, {Qt.r(2)}, 0",
            f"v_mfma_f32_32x32x16_bf16 {vr(Sx,16)}, {m.r(4)}, {Qm.r(4)}, {vr(Sx,16)}"]

def pv(Ox, vbuf, Sx):
    return [f"v_smfmac_f32_32x32x32_bf16 {Ox.r(16)}, {VF[vbuf].r(4, 4*j)}, {vr(Sx+8*j,8)}, {vr(V_IDX)}" for j in range(2)]

def phase(a, Sx, mfmas, hooks=None):
    n = len(mfmas)
    per = [16 // n + (1 if i < 16 % n else 0) for i in range(n)]
    e = 0
    for g in range(n):
        a(mfmas[g])
        for _ in range(per[g]):
            if hooks and e in hooks:
                for x in hooks[e]: a(x)
            a(f"v_exp_f32 {vr(Sx+e)}, {vr(Sx+e)}")
            e += 1

DBG4 = bool(opt("dbg4"))
DBG2 = bool(opt("dbg2")) or bool(opt("dbg3"))
def ts(a, i):
    if DBG2:
        a(f"s_memtime s[{60+2*i}:{61+2*i}]")
        a(f"s_memrealtime s[{74+2*i}:{75+2*i}]")

def t4(a, first=False):
    if not DBG4: return
    uid[0] += 1
    u = uid[0]
    if not first:
        a("s_memtime s[64:65]\ns_memrealtime s[66:67]")
    a(f"""
    s_waitcnt lgkmcnt(0)
    s_cmp_lg_u32 s{S_WAVE}, 0
    s_cbranch_scc1 L_t4_{u}
    v_mov_b32 {vr(T0)}, s64
    v_mov_b32 {vr(T1)}, s66
    v_mov_b32 {vr(T2)}, s68
    s_mov_b64 exec, 1
    global_store_dwordx2 {vr(T2)}, {vr(T0,2)}, s[58:59]
    s_mov_b64 exec, -1
    s_nop 4
    """)
    a.label(f"L_t4_{u}")
    a("s_add_u32 s68, s68, 8")

DBG3 = bool(opt("dbg3"))
def t3(a, k):
    if DBG3:
        a(f"s_memtime s[{80+2*k}:{81+2*k}]")

def zero16(a, Rx):
    a(f"v_mfma_f32_32x32x8_bf16 {Rx.r(16)}, {vr(V_Z2,2)}, {vr(V_Z2,2)}, 0")


STF = opt('stf', '').replace('+', ' ')

def send(r):
    o = (r >> 1) * 3328
    l = [f"ds_write_b128 {vr(V_SND)}, {O[r].r(4, 4*k)} offset:{o + 1024*k}" for k in range(3)]
    l.append(f"ds_write_b32 {vr(V_SND4)}, {O[r].r(1, 12)} offset:{o + 3072}")
    return l

def recv(slot, P):
    o = slot * 3328
    l = [f"ds_read_b128 {vr(P+4*k,4)}, {vr(V_RCV)} offset:{o + 1024*k}" for k in range(3)]
    l.append(f"ds_read_b32 {vr(P+12)}, {vr(V_RCV4)} offset:{o + 3072}")
    return l

def finalize(r, P, TT):
    Ox = O[r]
    assert Ox.kind == "v"
    l = []
    src = lambda i, n=1: Ox.r(n, i)
    l.append(f"v_add_f32 {vr(TT)}, {src(12)}, {vr(P+12)}")
    l.append(f"v_rcp_f32 {vr(TT)}, {vr(TT)}")
    for i in range(0, 12, 2):
        l.append(f"v_pk_add_f32 {vr(P+i,2)}, {vr(P+i,2)}, {src(i,2)}")
    for i in range(0, 12, 2):
        l.append(f"v_pk_mul_f32 {vr(P+i,2)}, {vr(P+i,2)}, {vr(TT,2)} op_sel_hi:[1,0]")
    for i in range(6):
        l.append(f"v_cvt_pk_bf16_f32 {vr(P+i)}, {vr(P+2*i)}, {vr(P+2*i+1)}")
    l.append("s_nop 1")
    l.append(f"v_permlane32_swap_b32 {vr(P)}, {vr(P+2)}")
    l.append(f"v_permlane32_swap_b32 {vr(P+1)}, {vr(P+3)}")
    l.append("s_nop 1")
    o = (r >> 1) * 64 * 40
    l.append(f"buffer_store_dwordx4 {vr(P,4)}, {vr(V_ST16)}, s[{SRD_O}:{SRD_O+3}], 0 offen offset:{o} {STF}")
    l.append(f"buffer_store_dwordx2 {vr(P+4,2)}, {vr(V_ST8)}, s[{SRD_O}:{SRD_O+3}], 0 offen offset:{o+32} {STF}")
    return l

def q_loads(a, R, half):
    o = half * 64 * 40
    a(f"buffer_load_dwordx4 {vr(R,4)}, {vr(V_QOFF)}, s[{SRD_Q}:{SRD_Q+3}], 0 offen offset:{o}")
    a(f"buffer_load_dwordx4 {vr(R+4,4)}, {vr(V_QOFF)}, s[{SRD_Q}:{SRD_Q+3}], 0 offen offset:{o+16}")
    a(f"buffer_load_dwordx2 {vr(R+8,2)}, {vr(V_QOFF)}, s[{SRD_Q}:{SRD_Q+3}], 0 offen offset:{o+32}")

def q_off(a):
    a(f"""
    v_and_b32 {vr(V_QOFF)}, 0xc0, {vr(V_TID)}
    v_lshl_add_u32 {vr(V_QOFF)}, {vr(V_QOFF)}, 1, {vr(V_LANE)}
    v_mul_u32_u24 {vr(V_QOFF)}, 40, {vr(V_QOFF)}
    """)

def q_norm_write(a, R, U, half):
    a(f"""
    v_and_b32 {vr(V_WA2)}, 0xc0, {vr(V_TID)}
    v_lshl_add_u32 {vr(V_WA2)}, {vr(V_WA2)}, 1, {vr(V_LANE)}
    v_lshlrev_b32 {vr(V_WA)}, 4, {vr(V_WA2)}
    v_lshl_add_u32 {vr(V_WA2)}, {vr(V_WA2)}, 3, s{S_QB0}
    """)
    norm_row(a, R, U, scale=T3)
    a(f"""
    ds_write_b128 {vr(V_WA)}, {vr(R,4)} offset:{QA0 + half*1024}
    ds_write_b128 {vr(V_WA)}, {vr(R+4,4)} offset:{QA1 + half*1024}
    ds_write_b64 {vr(V_WA2)}, {vr(R+8,2)} offset:{half*512}
    """)

def phase2(a, Sx, items, hooks=None):
    for e in range(17):
        for (pe, ins) in items:
            if pe == e: a(ins)
        if hooks and e in hooks:
            for x in hooks[e]: a(x)
        if e < 16:
            a(f"v_exp_f32 {vr(Sx+e)}, {vr(Sx+e)}")

ORDER_F = [(m, r) for hf in range(2) for m in range(4) for r in (2*hf, 2*hf+1)]
ORDER_L = ORDER_F[:12] + [(2, 2), (3, 2), (2, 3), (3, 3)]

def spread(hooks, lst, e0, e1):
    n = e1 - e0 + 1
    for k, ins in enumerate(lst):
        e = e0 + (k * n) // len(lst)
        hooks.setdefault(e, []).append(ins)

class Sub:
    def __init__(self): self.l = []
    def __call__(self, s):
        for x in s.strip("\n").split("\n"):
            x = x.strip()
            if x: self.l.append(x)
def cap(fn, *args, **kw):
    s = Sub(); fn(s, *args, **kw); return s.l

def gen():
    a = Asm()
    dbg_head = "s_memtime s[60:61]\ns_memrealtime s[70:71]\ns_load_dwordx2 s[58:59], s[0:1], 48" if DBG2 else ""
    name = "standalone__qk_norm__prompt_kernel"
    hdr = f"""; qk-norm attention, hand-written generator (gen/gen4.py)
; @launch grid=(256,1,1) block=(512,1,1) lds={LDS}
.amdgcn_target "amdgcn-amd-amdhsa--gfx950"
.text
.globl {name}
.p2align 8
.type {name},@function
{name}:
"""
    QR = S[0]
    QU = S[1]
    H1EARLY = bool(opt("h1early"))
    a(f"""
    s_cmp_ge_u32 s2, 256
    s_cbranch_scc1 L_end
    {dbg_head}
    s_load_dwordx4 s[20:23], s[0:1], 0
    s_load_dwordx4 s[24:27], s[0:1], 16
    s_load_dwordx2 s[28:29], s[0:1], 32
    s_and_b32 s{S_BH}, s2, 7
    s_lshr_b32 s3, s2, 5
    s_lshl_b32 s3, s3, 3
    s_add_u32 s{S_BH}, s{S_BH}, s3
    s_lshr_b32 s{S_QB}, s2, 3
    s_and_b32 s{S_QB}, s{S_QB}, 3
    v_and_b32 {vr(V_LANE)}, 63, {vr(V_TID)}
    v_lshrrev_b32 {vr(T0)}, 6, {vr(V_TID)}
    s_mul_i32 s35, s{S_BH}, {HEADB}
    v_readfirstlane_b32 s{S_WAVE}, {vr(T0)}
    s_mul_i32 s45, s{S_QB}, {512*40}
    s_add_u32 s45, s45, s35
    s_and_b32 s46, s{S_BH}, 31
    s_lshl_b32 s46, s46, 1
    s_and_b32 s47, s46, 0x7c
    s_lshr_b32 s{S_ROLE}, s{S_WAVE}, 2
    s_and_b32 s51, s{S_WAVE}, 3
    s_lshl_b32 s51, s51, 7
    v_and_b32 {vr(T2)}, 255, {vr(V_TID)}
    v_mul_u32_u24 {vr(V_GOFF)}, 40, {vr(T2)}
    """)
    q_off(a)
    a(f"""
    s_mov_b32 s{S_GOFF}, 0
    s_waitcnt lgkmcnt(0)
    s_load_dword s{S_T}, s[26:27], s47
    s_add_u32 s{SRD_Q}, s20, s45
    s_addc_u32 s{SRD_Q+1}, s21, 0
    s_mov_b32 s{SRD_Q+2}, {512*40}
    s_mov_b32 s{SRD_Q+3}, 0x00020000
    s_add_u32 s{SRD_K}, s22, s35
    s_addc_u32 s{SRD_K+1}, s23, 0
    s_add_u32 s{SRD_V}, s24, s35
    s_addc_u32 s{SRD_V+1}, s25, 0
    s_cmp_eq_u32 s{S_ROLE}, 0
    s_cselect_b32 s{SRD_S}, s{SRD_K}, s{SRD_V}
    s_cselect_b32 s{SRD_S+1}, s{SRD_K+1}, s{SRD_V+1}
    s_mov_b32 s{SRD_S+2}, {HEADB}
    s_mov_b32 s{SRD_S+3}, 0x00020000
    s_cbranch_scc1 L_skipH0
    """)
    q_loads(a, QR, 0)
    a.label("L_skipH0")
    emit_stage_loads(a)
    if H1EARLY:
        a("s_cbranch_scc1 L_skipH1")
        q_loads(a, QR2, 1)
        a.label("L_skipH1")
    a(f"""
    s_add_u32 s{SRD_O}, s28, s45
    s_addc_u32 s{SRD_O+1}, s29, 0
    s_mov_b32 s{SRD_O+2}, {512*40}
    s_mov_b32 s{SRD_O+3}, 0x00020000
    """)
    a(f"""
    s_cmp_eq_u32 s{S_ROLE}, 0
    s_cselect_b32 s3, 16, 48
    v_mul_u32_u24 {vr(V_WL)}, s3, {vr(T2)}
    v_lshlrev_b32 {vr(V_WL2)}, 3, {vr(T2)}
    """)
    a.c("LDS constants: K role writes KB1 plane [1,1,0,0]; V role writes ones chunk [1,0,0,0] at +40")
    a(f"""
    s_mov_b32 s49, 0x3f803f80
    s_mov_b32 s48, 0x00003f80
    s_cselect_b32 s3, s49, s48
    v_mov_b32 {vr(SU+2)}, s3
    v_mov_b32 {vr(SU+3)}, 0
    s_mov_b32 s48, {KB1}
    s_mov_b32 s49, {VOFF+40}
    s_cselect_b32 s3, s48, s49
    v_mov_b32 {vr(SU+4)}, s3
    v_add_u32 {vr(SU+5)}, {vr(SU+4)}, {vr(V_WL)}
    v_add_u32 {vr(SU+4)}, {vr(SU+4)}, {vr(V_WL2)}
    s_cselect_b64 vcc, -1, 0
    v_cndmask_b32 {vr(SU+4)}, {vr(SU+5)}, {vr(SU+4)}, vcc
    v_mov_b32 {vr(V_Z2)}, 0
    v_mov_b32 {vr(V_Z2+1)}, 0
    """)
    for b in range(2):
        a(f"ds_write_b64 {vr(SU+4)}, {vr(SU+2,2)} offset:{b*BUF}")
    a.c("zero accumulators via MFMA")
    a("s_nop 1")
    for o in O:
        zero16(a, o)
    a.c("read lane parts (T0 = n, T1 = h)")
    a(f"""
    v_and_b32 {vr(T0)}, 31, {vr(V_LANE)}
    v_lshrrev_b32 {vr(T1)}, 5, {vr(V_LANE)}
    s_lshl_b32 s3, s{S_ROLE}, 9
    v_lshlrev_b32 {vr(V_KL)}, 4, {vr(T0)}
    v_lshl_add_u32 {vr(V_KL)}, {vr(T1)}, 12, {vr(V_KL)}
    v_add_u32 {vr(V_KL)}, s3, {vr(V_KL)}
    s_lshl_b32 s3, s{S_ROLE}, 8
    s_add_u32 s3, s3, {KB0}
    v_lshlrev_b32 {vr(V_KBL)}, 3, {vr(T0)}
    v_lshl_add_u32 {vr(V_KBL)}, {vr(T1)}, 11, {vr(V_KBL)}
    v_add_u32 {vr(V_KBL)}, s3, {vr(V_KBL)}
    """)
    a(f"""
    s_lshl_b32 s3, s{S_ROLE}, 5
    s_add_u32 s3, s3, s51
    v_add_u32 {vr(SU+6)}, s3, {vr(T0)}
    s_xor_b32 s3, s3, 32
    v_add_u32 {vr(SU+7)}, s3, {vr(T0)}
    v_lshlrev_b32 {vr(SU+8)}, 13, {vr(T1)}
    v_add_u32 {vr(SU+8)}, {QA0}, {vr(SU+8)}
    v_lshlrev_b32 {vr(SU+9)}, 12, {vr(T1)}
    v_add_u32 {vr(SU+9)}, {QB0}, {vr(SU+9)}
    v_lshl_add_u32 {vr(V_QAO)}, {vr(SU+6)}, 4, {vr(SU+8)}
    v_lshl_add_u32 {vr(V_QAE)}, {vr(SU+7)}, 4, {vr(SU+8)}
    v_lshl_add_u32 {vr(V_QBO)}, {vr(SU+6)}, 3, {vr(SU+9)}
    v_lshl_add_u32 {vr(V_QBE)}, {vr(SU+7)}, 3, {vr(SU+9)}
    """)
    a(f"""
    v_mul_u32_u24 {vr(SU+6)}, 40, {vr(SU+6)}
    v_lshl_add_u32 {vr(V_ST16)}, {vr(T1)}, 4, {vr(SU+6)}
    v_lshl_add_u32 {vr(V_ST8)}, {vr(T1)}, 24, {vr(SU+6)}
    s_mul_i32 s3, s{S_WAVE}, {RSLOT}
    s_add_u32 s3, s3, {XR}
    v_lshlrev_b32 {vr(SU+6)}, 4, {vr(V_LANE)}
    v_lshlrev_b32 {vr(SU+7)}, 2, {vr(V_LANE)}
    v_add_u32 {vr(V_SND)}, s3, {vr(SU+6)}
    v_add_u32 {vr(V_SND4)}, s3, {vr(SU+7)}
    s_xor_b32 s3, s{S_WAVE}, 4
    s_mul_i32 s3, s3, {RSLOT}
    s_add_u32 s3, s3, {XR}
    v_add_u32 {vr(V_RCV)}, s3, {vr(SU+6)}
    v_add_u32 {vr(V_RCV4)}, s3, {vr(SU+7)}
    """)
    a(f"""
    v_bfe_u32 {vr(T2)}, {vr(V_LANE)}, 2, 2
    v_lshl_add_u32 {vr(T2)}, {vr(T1)}, 3, {vr(T2)}
    v_mul_u32_u24 {vr(V_VL)}, 48, {vr(T2)}
    v_and_b32 {vr(T2)}, 3, {vr(V_LANE)}
    v_min_u32 {vr(SU+6)}, 1, {vr(T2)}
    v_add_u32 {vr(SU+6)}, 4, {vr(SU+6)}
    v_and_b32 {vr(SU+7)}, 16, {vr(V_LANE)}
    v_cmp_ne_u32 vcc, 0, {vr(SU+7)}
    s_mul_i32 s3, s{S_ROLE}, 1536
    s_add_u32 s3, s3, {VOFF}
    v_cndmask_b32 {vr(T2)}, {vr(T2)}, {vr(SU+6)}, vcc
    v_lshl_add_u32 {vr(V_VL)}, {vr(T2)}, 3, {vr(V_VL)}
    v_add_u32 {vr(V_VL)}, s3, {vr(V_VL)}
    v_mov_b32 {vr(V_IDX)}, 0xdddd
    v_mov_b32 {vr(V_KADDR)}, {vr(V_KL)}
    v_mov_b32 {vr(V_KBADDR)}, {vr(V_KBL)}
    v_mov_b32 {vr(V_VADDR)}, {vr(V_VL)}
    """)
    a.c("t -> scale (T3), bias pair -> plane QB1 row tid")
    BP = S[2] + 8
    a(f"""
    s_waitcnt lgkmcnt(0)
    s_and_b32 s46, s46, 2
    s_lshl_b32 s46, s46, 3
    s_lshr_b32 s{S_T}, s{S_T}, s46
    s_lshl_b32 s{S_T}, s{S_T}, 16
    v_mov_b32 {vr(T3)}, s{S_T}
    v_mul_f32 {vr(T3)}, 0x{LOG2E:08x}, {vr(T3)}
    v_or_b32 {vr(BP)}, 0x80000000, {vr(T3)}
    v_cvt_pk_bf16_f32 {vr(BP)}, {vr(BP)}, 0
    v_mov_b32 {vr(BP+1)}, 0
    s_mov_b32 s{S_QB0}, {QB0}
    v_lshl_add_u32 {vr(V_WA2)}, {vr(V_TID)}, 3, s{S_QB0}
    ds_write_b64 {vr(V_WA2)}, {vr(BP,2)} offset:{QB1-QB0}
    s_cmp_lg_u32 s{S_ROLE}, 0
    s_cbranch_scc1 L_proV
    """)
    a.c("K role: stage K chunk 0")
    a(f"""
    v_mov_b32 {vr(V_WA)}, {vr(V_WL)}
    v_mov_b32 {vr(V_WA2)}, {vr(V_WL2)}
    s_waitcnt vmcnt(0)
    """)
    emit_stage_compute_K(a)
    a("s_branch L_proE")
    a.label("L_proV")
    a.c("V role: Q first half, then V chunk 0")
    if H1EARLY:
        a("s_waitcnt vmcnt(6)")
    else:
        a("s_waitcnt vmcnt(3)")
        q_loads(a, QR2, 1)
    q_norm_write(a, QR, QU, 0)
    a(f"""
    v_mov_b32 {vr(V_WA)}, {vr(V_WL)}
    s_waitcnt vmcnt(3)
    """)
    emit_stage_compute_V(a)
    a.label("L_proE")
    a(f"""
    s_and_b32 s3, s{S_T}, 0x7fffffff
    s_waitcnt lgkmcnt(0)
    s_barrier
    s_cmp_gt_u32 s3, 0x41800000
    s_cbranch_scc1 L_fallback
    """)
    a.label("L_go")
    k_reads(a, 0, 0)
    q_reads(a, 0)
    q_reads(a, 1)
    k_reads(a, 1, 1)
    v_reads(a, 0, 0)
    a("s_waitcnt lgkmcnt(8)")
    for m in qk(S[0], 0, 0): a(m)
    a("s_waitcnt lgkmcnt(6)")
    for m in qk(S[1], 0, 1): a(m)
    a("s_nop 7")
    ts(a, 1)

    kf = [("c0", 0), ("c0", 1)]
    vf = [("c0", 0), None]
    def peel(order, cur, prev, nxt, kread_at, vread_at, pre, hooks_all, mf_pos=None):
        for p in range(16):
            a.c(f"phase {cur} p={p} tile={order[p]}")
            a("s_waitcnt lgkmcnt(0)")
            for x in pre.get(p, []): a(x)
            hooks = {k: list(v) for k, v in hooks_all.get(p, {}).items()}
            if p in vread_at:
                c, m = vread_at[p]
                v_reads(a, m % 2, m)
                vf[m % 2] = (c, m)
            tight = False
            if p in kread_at:
                ent = kread_at[p]
                c, m = ent[0], ent[1]
                if len(ent) > 2:
                    hooks.setdefault(ent[2], []).extend(cap(k_reads, m % 2, m))
                else:
                    k_reads(a, m % 2, m)
                kf[m % 2] = (c, m)
                knew = (p, m % 2)
            else:
                knew = None
            items = []
            if p == 0:
                pt = None if prev is None else (prev, 3, 3)
            else:
                pt = (cur,) + order[p-1]
            pos = (mf_pos or {}).get(p, [0, 4, 8, 12])
            if pt is not None:
                c, m, r = pt
                assert vf[m % 2] == (c, m), (cur, p, vf, pt)
                assert not (p in vread_at and vread_at[p][1] % 2 == m % 2), (cur, p)
                P = pv(O[r], m % 2, S[(p-1) % 4])
                items += [(pos[0], P[0]), (pos[1], P[1])]
            if p + 2 < 16:
                qt = (cur,) + order[p+2]
            elif nxt is not None:
                qt = (nxt, 0, p + 2 - 16)
            else:
                qt = None
            if qt is not None:
                c, m, r = qt
                assert kf[m % 2] == (c, m), (cur, p, kf, qt)
                if knew is not None and knew[1] == m % 2:
                    hooks.setdefault(pos[2], []).insert(0, "s_waitcnt lgkmcnt(0)")
                Qk = qk(S[(p+2) % 4], m % 2, r)
                items += [(pos[2], Qk[0]), (pos[3], Qk[1])]
            items2 = []
            for e in range(17):
                w = [x for x in hooks.get(e, []) if x.startswith("s_waitcnt")]
                if w and any(pe == e for pe, _ in items):
                    for x in w:
                        items2.append((e, x)); hooks[e].remove(x)
            phase2(a, S[p % 4], items2 + items, hooks)

    pre = {}; hk = {}
    uid[0] += 1
    hk[0] = {int(opt("c1e", "4")): [f"s_mov_b32 s{S_GOFF}, {CH*40}"] + cap(emit_stage_loads)}
    H1P = int(opt("h1p", "5"))
    s = Sub()
    s(f"s_cmp_eq_u32 s{S_ROLE}, 0")
    s("s_cbranch_scc1 L_skipH1n")
    s("s_waitcnt vmcnt(3)")
    q_norm_write(s, QR2, SU, 1)
    pre[H1P] = s.l + ["L_skipH1n:"]
    pre[6] = ["s_barrier"] + cap(q_reads, 2) + cap(q_reads, 3)
    hk[6] = {8: ["s_waitcnt lgkmcnt(6)"]}
    C1P = int(opt("c1p", "9"))
    s = Sub()
    class LA(Sub):
        def label(self, x): self.l.append(x + ":")
    s = LA()
    emit_stage_write(s, BUF)
    s(f"s_mov_b32 s{S_GOFF}, {2*CH*40}")
    emit_stage_loads(s)
    pre[C1P] = s.l
    hk[13] = {8: ["s_waitcnt lgkmcnt(0)", "s_barrier",
                  f"v_add_u32 {vr(V_KADDR)}, {BUF}, {vr(V_KL)}", f"v_add_u32 {vr(V_KBADDR)}, {BUF}, {vr(V_KBL)}"]}
    pre[15] = [f"v_add_u32 {vr(V_VADDR)}, {BUF}, {vr(V_VL)}"]
    kr = {1: ("c0", 2), 3: ("c0", 3), 5: ("c0", 0), 7: ("c0", 1), 9: ("c0", 2), 11: ("c0", 3), 13: ("c1", 0, 8)}
    vrd = {2: ("c0", 1), 4: ("c0", 2), 6: ("c0", 3), 8: ("c0", 0), 10: ("c0", 1), 12: ("c0", 2), 13: ("c0", 3), 15: ("c1", 0)}
    _call = Asm.__call__
    def call2(self, s_):
        for x in s_.strip("\n").split("\n"):
            x = x.strip()
            if not x: continue
            if x.endswith(":"): self.l.append(x)
            else: self.l.append("  " + x)
    Asm.__call__ = call2
    peel(ORDER_F, "c0", None, "c1", kr, vrd, pre, hk)
    a(f"""
    s_mov_b32 s{S_RN}, 0
    s_mov_b32 s{S_CNT}, {NCH-2}
    """)
    if opt("align"):
        a.l.append(f".p2align {opt('align')}")
    a.label("L_loop")
    for m in range(4):
        for i in range(4):
            if i == 0:
                a("s_waitcnt lgkmcnt(0)")
                if m == 3:
                    a("s_barrier")
                    a(f"v_add_u32 {vr(V_KADDR)}, s{S_RN}, {vr(V_KL)}")
                    a(f"v_add_u32 {vr(V_KBADDR)}, s{S_RN}, {vr(V_KBL)}")
                k_reads(a, (m+1) % 2, (m+1) % 4)
            if i == 2:
                a("s_waitcnt lgkmcnt(0)")
                if m == 3:
                    a(f"v_add_u32 {vr(V_VADDR)}, s{S_RN}, {vr(V_VL)}")
                v_reads(a, (m+1) % 2, (m+1) % 4)
            if m == STG_M and i == STG_I:
                u = "L_skipst"
                emit_stage_write(a, f"s{S_RN}")
                a(f"s_add_u32 s{S_GOFF}, s{S_GOFF}, {CH*40}")
                a(f"s_cmp_eq_u32 s{S_CNT}, 1")
                a(f"s_cbranch_scc1 {u}")
                emit_stage_loads(a)
                a.label(u)
            P = pv(O[(i-1) % 4], (m-1) % 2 if i == 0 else m % 2, S[(i-1) % 4])
            Qk = qk(S[(i+2) % 4], (m+1) % 2 if i >= 2 else m % 2, (i+2) % 4)
            phase(a, S[i], P + Qk)
    a(f"""
    s_xor_b32 s{S_RN}, s{S_RN}, {BUF}
    s_sub_u32 s{S_CNT}, s{S_CNT}, 1
    s_cmp_lg_u32 s{S_CNT}, 0
    s_cbranch_scc1 L_loop
    """)
    kf[:] = [("cl", 0), ("cp", 3)]
    vf[:] = [("cl", 0), ("cp", 3)]
    pre = {}; hk = {}
    PX = SU
    X1S = int(opt("x1s", "8"))
    hk[X1S] = {}
    spread(hk[X1S], send(0), 4, 10)
    pre[X1S+1] = ["s_barrier"] + recv(0, PX)
    f1 = finalize(1, PX, T2)
    hk[X1S+2] = {}; hk[X1S+3] = {}
    half = len(f1) // 2
    spread(hk[X1S+2], f1[:half], 1, 15)
    spread(hk[X1S+3], f1[half:], 1, 15)
    hk[14] = {}
    spread(hk[14], send(2), 14, 16)
    pre[15] = ["s_barrier"] + recv(1, PX)
    Pl = pv(O[3], 1, S[3])
    hk[15] = {9: ["s_nop 1", Pl[0]]} if not opt("nosplit") else {}
    if DBG2:
        pre[12] = ["s_memtime s[64:65]", "s_memrealtime s[78:79]"]
    kr = {0: ("cl", 1), 1: ("cl", 2), 3: ("cl", 3), 5: ("cl", 0), 7: ("cl", 1), 9: ("cl", 2), 10: ("cl", 3)}
    vrd = {2: ("cl", 1), 4: ("cl", 2), 6: ("cl", 3), 8: ("cl", 0), 10: ("cl", 1), 12: ("cl", 2), 13: ("cl", 3)}
    mfp = {14: [0, 2, 8, 12], 15: [0, 2, 8, 12]}
    peel(ORDER_L, "cl", "cp", None, kr, vrd, pre, hk, mfp)
    a("s_nop 1")
    if opt("nosplit"): a(Pl[0])
    a(Pl[1])
    a("s_waitcnt lgkmcnt(0)")
    a("s_nop 7\ns_nop 3")
    for x in finalize(3, PX, T2): a(x)
    if DBG2:
        a(f"""
        s_waitcnt vmcnt(0)
        s_memtime s[66:67]
        s_memrealtime s[72:73]
        s_waitcnt lgkmcnt(0)
        s_cmp_lg_u32 s{S_WAVE}, 0
        s_cbranch_scc1 L_end
        s_lshl_b32 s3, s2, 5
        v_mov_b32 v0, s3
        v_mov_b32 v2, s60
        v_mov_b32 v3, s62
        v_mov_b32 v4, s64
        v_mov_b32 v5, s66
        v_mov_b32 v6, s70
        v_mov_b32 v7, s72
        v_mov_b32 v8, s76
        v_mov_b32 v9, s78
        s_mov_b64 exec, 1
        global_store_dwordx4 v0, v[2:5], s[58:59]
        global_store_dwordx4 v0, v[6:9], s[58:59] offset:16
        """)
    a.label("L_end")
    a("s_endpgm")
    a.label("L_fallback")
    MX = [V_QOFF, V_FB1, V_KADDR, V_KBADDR]
    FK, FKB = V_VADDR, T3
    a(f"""
    s_cmp_eq_u32 s{S_ROLE}, 0
    s_cbranch_scc1 L_fb_skipH1
    s_waitcnt vmcnt(0)
    """)
    q_norm_write(a, QR2, SU, 1)
    a.label("L_fb_skipH1")
    a(f"""
    s_waitcnt vmcnt(0) lgkmcnt(0)
    s_barrier
    s_mov_b32 s{S_GOFF}, 0
    s_mov_b32 s{S_CNT}, {NCH}
    """)
    for i in range(4):
        q_reads(a, i)
    for i in range(4):
        a(f"v_mov_b32 {vr(MX[i])}, 0xff800000")
    a("s_waitcnt lgkmcnt(0)")
    a.label("L_fb_chunk")
    emit_stage_loads(a)
    emit_stage_write(a, 0)
    a(f"""
    s_waitcnt lgkmcnt(0)
    s_barrier
    v_and_b32 {vr(T0)}, 31, {vr(V_LANE)}
    v_lshrrev_b32 {vr(T1)}, 5, {vr(V_LANE)}
    v_lshlrev_b32 {vr(FK)}, 4, {vr(T0)}
    v_lshl_add_u32 {vr(FK)}, {vr(T1)}, 12, {vr(FK)}
    v_lshlrev_b32 {vr(FKB)}, 3, {vr(T0)}
    v_lshl_add_u32 {vr(FKB)}, {vr(T1)}, 11, {vr(FKB)}
    v_add_u32 {vr(FKB)}, {KB0}, {vr(FKB)}
    s_mov_b32 s3, 8
    """)
    a.label("L_fb_tile")
    k_reads(a, 0, 0, FK, FKB)
    a("s_waitcnt lgkmcnt(0)")
    for i in range(4):
        for x in qk(S[i], 0, i): a(x)
    a("s_nop 7\ns_nop 7")
    for i in range(4):
        for r in range(0, 16, 2):
            a(f"v_max3_f32 {vr(MX[i])}, {vr(S[i]+r)}, {vr(S[i]+r+1)}, {vr(MX[i])}")
    a(f"""
    v_add_u32 {vr(FK)}, 512, {vr(FK)}
    v_add_u32 {vr(FKB)}, 256, {vr(FKB)}
    s_sub_u32 s3, s3, 1
    s_cmp_lg_u32 s3, 0
    s_cbranch_scc1 L_fb_tile
    s_barrier
    s_add_u32 s{S_GOFF}, s{S_GOFF}, {CH*40}
    s_sub_u32 s{S_CNT}, s{S_CNT}, 1
    s_cmp_lg_u32 s{S_CNT}, 0
    s_cbranch_scc1 L_fb_chunk
    """)
    a(f"""
    v_lshlrev_b32 {vr(T3)}, 3, {vr(V_TID)}
    v_add_u32 {vr(T3)}, {QB1}, {vr(T3)}
    ds_read_b32 {vr(SU)}, {vr(T3)}
    s_waitcnt lgkmcnt(0)
    v_lshlrev_b32 {vr(SU)}, 16, {vr(SU)}
    s_barrier
    """)
    for i in range(4):
        Ox = MX[i]
        at = V_QBE if (i & 1) == 0 else V_QBO
        a(f"""
        v_mov_b32 {vr(T1)}, {vr(Ox)}
        s_nop 1
        v_permlane32_swap_b32 {vr(Ox)}, {vr(T1)}
        s_nop 1
        v_max_f32 {vr(T0)}, {vr(Ox)}, {vr(T1)}
        v_sub_f32 {vr(T0)}, {vr(SU)}, {vr(T0)}
        v_cvt_pk_bf16_f32 {vr(T1)}, {vr(T0)}, 0
        v_lshlrev_b32 {vr(T2)}, 16, {vr(T1)}
        v_sub_f32 {vr(T2)}, {vr(T0)}, {vr(T2)}
        v_cvt_pk_bf16_f32 {vr(SU+2)}, {vr(T0)}, {vr(T2)}
        v_mov_b32 {vr(SU+3)}, 0
        v_or_b32 {vr(SU+4)}, 0x1000, {vr(at)}
        ds_write_b64 {vr(SU+4)}, {vr(SU+2,2)} offset:{(i >> 1) * 512}
        """)
    a(f"s_mov_b32 s{S_GOFF}, 0")
    emit_stage_loads(a)
    emit_stage_write(a, 0)
    q_off(a)
    a(f"""
    s_cmp_eq_u32 s{S_ROLE}, 0
    s_cbranch_scc1 L_fb_skipH1l
    """)
    q_loads(a, QR2, 1)
    a.label("L_fb_skipH1l")
    a(f"""
    v_mov_b32 {vr(T3)}, s{S_T}
    v_mul_f32 {vr(T3)}, 0x{LOG2E:08x}, {vr(T3)}
    v_mov_b32 {vr(V_KADDR)}, {vr(V_KL)}
    v_mov_b32 {vr(V_KBADDR)}, {vr(V_KBL)}
    v_mov_b32 {vr(V_VADDR)}, {vr(V_VL)}
    s_waitcnt lgkmcnt(0)
    s_barrier
    s_branch L_go
    """)
    ftr = f"""
.section .rodata,"a"
.p2align 6
.amdhsa_kernel {name}
  .amdhsa_next_free_vgpr {NV}
  .amdhsa_next_free_sgpr 102
  .amdhsa_accum_offset {ACC_OFF}
  .amdhsa_group_segment_fixed_size 0
  .amdhsa_kernarg_size 56
  .amdhsa_user_sgpr_count 2
  .amdhsa_user_sgpr_kernarg_segment_ptr 1
  .amdhsa_system_sgpr_workgroup_id_x 1
.end_amdhsa_kernel
"""
    return hdr + a.text() + ftr

if __name__ == "__main__":
    av = [x for x in sys.argv[1:] if not x.startswith("--")]
    out = av[0] if av else "v4.s"
    open(out, "w").write(gen())
```

```python
import sys

class Asm:
    def __init__(self):
        self.l = []
    def __call__(self, s):
        for x in s.strip("\n").split("\n"):
            x = x.strip()
            if x:
                self.l.append("  " + x)
    def label(self, s):
        self.l.append(s + ":")
    def c(self, s):
        self.l.append("  ; " + s)
    def text(self):
        return "\n".join(self.l) + "\n"

def vr(a, n=1):
    return f"v{a}" if n == 1 else f"v[{a}:{a+n-1}]"

class R:
    def __init__(self, kind, idx):
        self.kind, self.idx = kind, idx
    def r(self, n=1, off=0):
        a = self.idx + off
        return f"{self.kind}{a}" if n == 1 else f"{self.kind}[{a}:{a+n-1}]"
    def o(self, off):
        return R(self.kind, self.idx + off)

OPT = {}
for _x in sys.argv[1:]:
    if _x.startswith("--"):
        k, _, v = _x[2:].partition("=")
        OPT[k] = v if v else "1"
def opt(k, d=None): return OPT.get(k, d)

CH = 256
NCH = 2048 // CH
KA0, KA1, KB0, KB1, VOFF = 0, 4096, 8192, 10240, 12288
BUF = 24576
XR = 2 * BUF
QA0, QA1, QB0, QB1 = XR, XR + 8192, XR + 16384, XR + 20480
RSLOT = 6656
LDS = XR + 8 * RSLOT
HEADB = 2048 * 40
V_TID, V_LANE = 0, 1
V_KADDR, V_KBADDR, V_VADDR = 2, 3, 4
V_KL, V_KBL, V_VL = 5, 6, 7
V_GOFF, V_WL, V_WL2, V_WA, V_WA2 = 8, 9, 10, 11, 12
V_QOFF = 13
T0, T1, T2, T3 = 14, 15, 16, 17
V_IDX = 18
V_FB1 = 19
V_QAE, V_QAO, V_QBE, V_QBO = 20, 21, 22, 23
V_SND, V_SND4, V_RCV, V_RCV4, V_ST16, V_ST8 = 24, 25, 26, 27, 28, 29
V_Z2 = 30
SB = 32
S = [SB, SB + 16, SB + 32, SB + 48]
AG = opt("agpr", "")
_v = SB + 64
_a = 0
def alloc(n, kind):
    global _v, _a
    if kind == "a":
        r = R("a", _a); _a += n
    else:
        r = R("v", _v); _v += n
    return r
ST = alloc(10, "v").idx
SU = alloc(20, "v").idx
QR2 = alloc(10, "v").idx
_v = (_v + 3) // 4 * 4
O = [alloc(16, "a" if "O" in AG else "v") for _ in range(4)]
Q = []
for _i in range(4):
    _m = alloc(4, "a" if "Q" in AG else "v"); _t = alloc(2, "a" if "Q" in AG else "v")
    Q.append((_m, _t))
KF = []
for _i in range(2):
    _m = alloc(4, "a" if "K" in AG else "v"); _t = alloc(2, "a" if "K" in AG else "v")
    KF.append((_m, _t))
VF = [alloc(8, "a" if "V" in AG else "v") for _ in range(2)]
ACC_OFF = (_v + 3) // 4 * 4
NV = ACC_OFF + _a
assert NV <= 256, NV

S_WAVE, S_ROLE, S_BH, S_QB = 32, 33, 30, 31
S_RN = 42
S_GOFF = 43
S_CNT = 44
S_T = 34
S_QROW = 50
S_QB0 = 52
SRD_K, SRD_V, SRD_Q, SRD_O, SRD_S = 8, 12, 4, 16, 36

LOG2E = 0x3fb8aa3b
STG_M = int(opt("stgm", "1"))
STG_I = int(opt("stgi", "1"))

def norm_row(a, RAW, UN, scale=None):
    a(f"v_dot2_f32_bf16 {vr(T0)}, {vr(RAW)}, {vr(RAW)}, 0")
    a(f"v_dot2_f32_bf16 {vr(T1)}, {vr(RAW+1)}, {vr(RAW+1)}, 0")
    for i in range(2, 10, 2):
        a(f"v_dot2_f32_bf16 {vr(T0)}, {vr(RAW+i)}, {vr(RAW+i)}, {vr(T0)}")
        a(f"v_dot2_f32_bf16 {vr(T1)}, {vr(RAW+i+1)}, {vr(RAW+i+1)}, {vr(T1)}")
    for i in range(2):
        a(f"v_lshlrev_b32 {vr(UN+2*i)}, 16, {vr(RAW+i)}")
        a(f"v_and_b32 {vr(UN+2*i+1)}, 0xffff0000, {vr(RAW+i)}")
    a(f"v_add_f32 {vr(T0)}, {vr(T0)}, {vr(T1)}")
    a(f"v_sqrt_f32 {vr(T0)}, {vr(T0)}")
    for i in range(2, 5):
        a(f"v_lshlrev_b32 {vr(UN+2*i)}, 16, {vr(RAW+i)}")
        a(f"v_and_b32 {vr(UN+2*i+1)}, 0xffff0000, {vr(RAW+i)}")
    a(f"v_add_f32 {vr(T0)}, 0x358637bd, {vr(T0)}")
    a(f"v_rcp_f32 {vr(T2)}, {vr(T0)}")
    for i in range(5, 10):
        a(f"v_lshlrev_b32 {vr(UN+2*i)}, 16, {vr(RAW+i)}")
        a(f"v_and_b32 {vr(UN+2*i+1)}, 0xffff0000, {vr(RAW+i)}")
    if scale is not None:
        a(f"v_mul_f32 {vr(T2)}, {vr(T2)}, {vr(scale)}")
        a("s_nop 0")
    for i in range(10):
        a(f"v_pk_mul_f32 {vr(UN+2*i,2)}, {vr(UN+2*i,2)}, {vr(T2,2)} op_sel_hi:[1,0]")
    for i in range(10):
        a(f"v_cvt_pk_bf16_f32 {vr(RAW+i)}, {vr(UN+2*i)}, {vr(UN+2*i+1)}")

def emit_stage_compute_K(a):
    norm_row(a, ST, SU)
    a(f"ds_write_b128 {vr(V_WA)}, {vr(ST,4)} offset:{KA0}")
    a(f"ds_write_b128 {vr(V_WA)}, {vr(ST+4,4)} offset:{KA1}")
    a(f"ds_write_b64 {vr(V_WA2)}, {vr(ST+8,2)} offset:{KB0}")

def emit_stage_compute_V(a):
    a(f"ds_write_b128 {vr(V_WA)}, {vr(ST,4)} offset:{VOFF}")
    a(f"ds_write_b128 {vr(V_WA)}, {vr(ST+4,4)} offset:{VOFF+16}")
    a(f"ds_write_b64 {vr(V_WA)}, {vr(ST+8,2)} offset:{VOFF+32}")

def emit_stage_loads(a):
    a(f"buffer_load_dwordx4 {vr(ST,4)}, {vr(V_GOFF)}, s[{SRD_S}:{SRD_S+3}], s{S_GOFF} offen")
    a(f"buffer_load_dwordx4 {vr(ST+4,4)}, {vr(V_GOFF)}, s[{SRD_S}:{SRD_S+3}], s{S_GOFF} offen offset:16")
    a(f"buffer_load_dwordx2 {vr(ST+8,2)}, {vr(V_GOFF)}, s[{SRD_S}:{SRD_S+3}], s{S_GOFF} offen offset:32")

uid = [0]
def emit_stage_write(a, wb, vm=0):
    uid[0] += 1
    u = uid[0]
    a(f"v_add_u32 {vr(V_WA)}, {wb}, {vr(V_WL)}")
    a(f"v_add_u32 {vr(V_WA2)}, {wb}, {vr(V_WL2)}")
    a(f"s_waitcnt vmcnt({vm})")
    a(f"s_cmp_lg_u32 s{S_ROLE}, 0")
    a(f"s_cbranch_scc1 L_stV{u}")
    emit_stage_compute_K(a)
    a(f"s_branch L_stE{u}")
    a.label(f"L_stV{u}")
    emit_stage_compute_V(a)
    a.label(f"L_stE{u}")

def k_reads(a, buf, m, ka=V_KADDR, kb=V_KBADDR, stride=2):
    mm, t = KF[buf]
    a(f"ds_read_b128 {mm.r(4)}, {vr(ka)} offset:{m*512*stride}")
    a(f"ds_read_b64 {t.r(2)}, {vr(kb)} offset:{m*256*stride}")

def v_reads(a, buf, m):
    for j in range(2):
        for half in range(2):
            off = (m*64 + 16*j + 4*half) * 48
            a(f"ds_read_b64_tr_b16 {VF[buf].r(2, 4*j + 2*half)}, {vr(V_VADDR)} offset:{off}")

def q_reads(a, i):
    Qm, Qt = Q[i]
    am, at = (V_QAE, V_QBE) if (i & 1) == 0 else (V_QAO, V_QBO)
    a(f"ds_read_b128 {Qm.r(4)}, {vr(am)} offset:{(i >> 1) * 1024}")
    a(f"ds_read_b64 {Qt.r(2)}, {vr(at)} offset:{(i >> 1) * 512}")

def qk(Sx, kbuf, qi):
    m, t = KF[kbuf]
    Qm, Qt = Q[qi]
    return [f"v_mfma_f32_32x32x8_bf16 {vr(Sx,16)}, {t.r(2)}, {Qt.r(2)}, 0",
            f"v_mfma_f32_32x32x16_bf16 {vr(Sx,16)}, {m.r(4)}, {Qm.r(4)}, {vr(Sx,16)}"]

def pv(Ox, vbuf, Sx):
    return [f"v_smfmac_f32_32x32x32_bf16 {Ox.r(16)}, {VF[vbuf].r(4, 4*j)}, {vr(Sx+8*j,8)}, {vr(V_IDX)}" for j in range(2)]

def phase(a, Sx, mfmas, hooks=None):
    n = len(mfmas)
    per = [16 // n + (1 if i < 16 % n else 0) for i in range(n)]
    e = 0
    for g in range(n):
        a(mfmas[g])
        for _ in range(per[g]):
            if hooks and e in hooks:
                for x in hooks[e]: a(x)
            a(f"v_exp_f32 {vr(Sx+e)}, {vr(Sx+e)}")
            e += 1

DBG4 = bool(opt("dbg4"))
DBG2 = bool(opt("dbg2")) or bool(opt("dbg3"))
def ts(a, i):
    if DBG2:
        a(f"s_memtime s[{60+2*i}:{61+2*i}]")
        a(f"s_memrealtime s[{74+2*i}:{75+2*i}]")

def t4(a, first=False):
    if not DBG4: return
    uid[0] += 1
    u = uid[0]
    if not first:
        a("s_memtime s[64:65]\ns_memrealtime s[66:67]")
    a(f"""
    s_waitcnt lgkmcnt(0)
    s_cmp_lg_u32 s{S_WAVE}, 0
    s_cbranch_scc1 L_t4_{u}
    v_mov_b32 {vr(T0)}, s64
    v_mov_b32 {vr(T1)}, s66
    v_mov_b32 {vr(T2)}, s68
    s_mov_b64 exec, 1
    global_store_dwordx2 {vr(T2)}, {vr(T0,2)}, s[58:59]
    s_mov_b64 exec, -1
    s_nop 4
    """)
    a.label(f"L_t4_{u}")
    a("s_add_u32 s68, s68, 8")

DBG3 = bool(opt("dbg3"))
def t3(a, k):
    if DBG3:
        a(f"s_memtime s[{80+2*k}:{81+2*k}]")

def zero16(a, Rx):
    a(f"v_mfma_f32_32x32x8_bf16 {Rx.r(16)}, {vr(V_Z2,2)}, {vr(V_Z2,2)}, 0")


STF = opt('stf', '').replace('+', ' ')

def send(r):
    o = (r >> 1) * 3328
    l = [f"ds_write_b128 {vr(V_SND)}, {O[r].r(4, 4*k)} offset:{o + 1024*k}" for k in range(3)]
    l.append(f"ds_write_b32 {vr(V_SND4)}, {O[r].r(1, 12)} offset:{o + 3072}")
    return l

def recv(slot, P):
    o = slot * 3328
    l = [f"ds_read_b128 {vr(P+4*k,4)}, {vr(V_RCV)} offset:{o + 1024*k}" for k in range(3)]
    l.append(f"ds_read_b32 {vr(P+12)}, {vr(V_RCV4)} offset:{o + 3072}")
    return l

def finalize(r, P, TT):
    Ox = O[r]
    assert Ox.kind == "v"
    l = []
    src = lambda i, n=1: Ox.r(n, i)
    l.append(f"v_add_f32 {vr(TT)}, {src(12)}, {vr(P+12)}")
    l.append(f"v_rcp_f32 {vr(TT)}, {vr(TT)}")
    for i in range(0, 12, 2):
        l.append(f"v_pk_add_f32 {vr(P+i,2)}, {vr(P+i,2)}, {src(i,2)}")
    for i in range(0, 12, 2):
        l.append(f"v_pk_mul_f32 {vr(P+i,2)}, {vr(P+i,2)}, {vr(TT,2)} op_sel_hi:[1,0]")
    for i in range(6):
        l.append(f"v_cvt_pk_bf16_f32 {vr(P+i)}, {vr(P+2*i)}, {vr(P+2*i+1)}")
    l.append("s_nop 1")
    l.append(f"v_permlane32_swap_b32 {vr(P)}, {vr(P+2)}")
    l.append(f"v_permlane32_swap_b32 {vr(P+1)}, {vr(P+3)}")
    l.append("s_nop 1")
    o = (r >> 1) * 64 * 40
    l.append(f"buffer_store_dwordx4 {vr(P,4)}, {vr(V_ST16)}, s[{SRD_O}:{SRD_O+3}], 0 offen offset:{o} {STF}")
    l.append(f"buffer_store_dwordx2 {vr(P+4,2)}, {vr(V_ST8)}, s[{SRD_O}:{SRD_O+3}], 0 offen offset:{o+32} {STF}")
    return l

def q_loads(a, R, half):
    o = half * 64 * 40
    a(f"buffer_load_dwordx4 {vr(R,4)}, {vr(V_QOFF)}, s[{SRD_Q}:{SRD_Q+3}], 0 offen offset:{o}")
    a(f"buffer_load_dwordx4 {vr(R+4,4)}, {vr(V_QOFF)}, s[{SRD_Q}:{SRD_Q+3}], 0 offen offset:{o+16}")
    a(f"buffer_load_dwordx2 {vr(R+8,2)}, {vr(V_QOFF)}, s[{SRD_Q}:{SRD_Q+3}], 0 offen offset:{o+32}")

def q_off(a):
    a(f"""
    v_and_b32 {vr(V_QOFF)}, 0xc0, {vr(V_TID)}
    v_lshl_add_u32 {vr(V_QOFF)}, {vr(V_QOFF)}, 1, {vr(V_LANE)}
    v_mul_u32_u24 {vr(V_QOFF)}, 40, {vr(V_QOFF)}
    """)

def q_norm_write(a, R, U, half):
    a(f"""
    v_and_b32 {vr(V_WA2)}, 0xc0, {vr(V_TID)}
    v_lshl_add_u32 {vr(V_WA2)}, {vr(V_WA2)}, 1, {vr(V_LANE)}
    v_lshlrev_b32 {vr(V_WA)}, 4, {vr(V_WA2)}
    v_lshl_add_u32 {vr(V_WA2)}, {vr(V_WA2)}, 3, s{S_QB0}
    """)
    norm_row(a, R, U, scale=T3)
    a(f"""
    ds_write_b128 {vr(V_WA)}, {vr(R,4)} offset:{QA0 + half*1024}
    ds_write_b128 {vr(V_WA)}, {vr(R+4,4)} offset:{QA1 + half*1024}
    ds_write_b64 {vr(V_WA2)}, {vr(R+8,2)} offset:{half*512}
    """)

def phase2(a, Sx, items, hooks=None):
    for e in range(17):
        for (pe, ins) in items:
            if pe == e: a(ins)
        if hooks and e in hooks:
            for x in hooks[e]: a(x)
        if e < 16:
            a(f"v_exp_f32 {vr(Sx+e)}, {vr(Sx+e)}")

ORDER_F = [(m, r) for hf in range(2) for m in range(4) for r in (2*hf, 2*hf+1)]
ORDER_L = ORDER_F[:12] + [(2, 2), (3, 2), (2, 3), (3, 3)]

def spread(hooks, lst, e0, e1):
    n = e1 - e0 + 1
    for k, ins in enumerate(lst):
        e = e0 + (k * n) // len(lst)
        hooks.setdefault(e, []).append(ins)

class Sub:
    def __init__(self): self.l = []
    def __call__(self, s):
        for x in s.strip("\n").split("\n"):
            x = x.strip()
            if x: self.l.append(x)
def cap(fn, *args, **kw):
    s = Sub(); fn(s, *args, **kw); return s.l

PRIO = {}
_ps = opt("prio", "")
if _ps and _ps[0] in "0123" :
    for _k, _ch in enumerate(_ps):
        if _ch != "-":
            PRIO[((3 + _k // 4) % 4, _k % 4)] = int(_ch)

def gen():
    a = Asm()
    dbg_head = "s_memtime s[60:61]\ns_memrealtime s[70:71]\ns_load_dwordx2 s[58:59], s[0:1], 48" if DBG2 else ""
    name = "standalone__qk_norm__prompt_kernel"
    hdr = f"""; qk-norm attention, hand-written generator (gen/gen4.py)
; @launch grid=(256,1,1) block=(512,1,1) lds={LDS}
.amdgcn_target "amdgcn-amd-amdhsa--gfx950"
.text
.globl {name}
.p2align 8
.type {name},@function
{name}:
"""
    QR = S[0]
    QU = S[1]
    H1EARLY = bool(opt("h1early"))
    a(f"""
    s_cmp_ge_u32 s2, 256
    s_cbranch_scc1 L_end
    {dbg_head}
    s_load_dwordx4 s[20:23], s[0:1], 0
    s_load_dwordx4 s[24:27], s[0:1], 16
    s_load_dwordx2 s[28:29], s[0:1], 32
    s_and_b32 s{S_BH}, s2, 7
    s_lshr_b32 s3, s2, 5
    s_lshl_b32 s3, s3, 3
    s_add_u32 s{S_BH}, s{S_BH}, s3
    s_lshr_b32 s{S_QB}, s2, 3
    s_and_b32 s{S_QB}, s{S_QB}, 3
    v_and_b32 {vr(V_LANE)}, 63, {vr(V_TID)}
    v_lshrrev_b32 {vr(T0)}, 6, {vr(V_TID)}
    s_mul_i32 s35, s{S_BH}, {HEADB}
    v_readfirstlane_b32 s{S_WAVE}, {vr(T0)}
    s_mul_i32 s45, s{S_QB}, {512*40}
    s_add_u32 s45, s45, s35
    s_and_b32 s46, s{S_BH}, 31
    s_lshl_b32 s46, s46, 1
    s_and_b32 s47, s46, 0x7c
    s_lshr_b32 s{S_ROLE}, s{S_WAVE}, 2
    s_and_b32 s51, s{S_WAVE}, 3
    s_lshl_b32 s51, s51, 7
    v_and_b32 {vr(T2)}, 255, {vr(V_TID)}
    v_mul_u32_u24 {vr(V_GOFF)}, 40, {vr(T2)}
    """)
    q_off(a)
    a(f"""
    s_mov_b32 s{S_GOFF}, 0
    s_waitcnt lgkmcnt(0)
    {"s_memtime s[80:81]" if DBG3 else ""}
    s_load_dword s{S_T}, s[26:27], s47
    s_add_u32 s{SRD_Q}, s20, s45
    s_addc_u32 s{SRD_Q+1}, s21, 0
    s_mov_b32 s{SRD_Q+2}, {512*40}
    s_mov_b32 s{SRD_Q+3}, 0x00020000
    s_add_u32 s{SRD_K}, s22, s35
    s_addc_u32 s{SRD_K+1}, s23, 0
    s_add_u32 s{SRD_V}, s24, s35
    s_addc_u32 s{SRD_V+1}, s25, 0
    s_cmp_eq_u32 s{S_ROLE}, 0
    s_cselect_b32 s{SRD_S}, s{SRD_K}, s{SRD_V}
    s_cselect_b32 s{SRD_S+1}, s{SRD_K+1}, s{SRD_V+1}
    s_mov_b32 s{SRD_S+2}, {HEADB}
    s_mov_b32 s{SRD_S+3}, 0x00020000
    s_cbranch_scc1 L_skipH0
    """)
    q_loads(a, QR, 0)
    a.label("L_skipH0")
    emit_stage_loads(a)
    if H1EARLY:
        a("s_cbranch_scc1 L_skipH1")
        q_loads(a, QR2, 1)
        a.label("L_skipH1")
    a(f"""
    s_add_u32 s{SRD_O}, s28, s45
    s_addc_u32 s{SRD_O+1}, s29, 0
    s_mov_b32 s{SRD_O+2}, {512*40}
    s_mov_b32 s{SRD_O+3}, 0x00020000
    """)
    a(f"""
    s_cmp_eq_u32 s{S_ROLE}, 0
    s_cselect_b32 s3, 16, 48
    v_mul_u32_u24 {vr(V_WL)}, s3, {vr(T2)}
    v_lshlrev_b32 {vr(V_WL2)}, 3, {vr(T2)}
    """)
    a.c("LDS constants: K role writes KB1 plane [1,1,0,0]; V role writes ones chunk [1,0,0,0] at +40")
    a(f"""
    s_mov_b32 s49, 0x3f803f80
    s_mov_b32 s48, 0x00003f80
    s_cselect_b32 s3, s49, s48
    v_mov_b32 {vr(SU+2)}, s3
    v_mov_b32 {vr(SU+3)}, 0
    s_mov_b32 s48, {KB1}
    s_mov_b32 s49, {VOFF+40}
    s_cselect_b32 s3, s48, s49
    v_mov_b32 {vr(SU+4)}, s3
    v_add_u32 {vr(SU+5)}, {vr(SU+4)}, {vr(V_WL)}
    v_add_u32 {vr(SU+4)}, {vr(SU+4)}, {vr(V_WL2)}
    s_cselect_b64 vcc, -1, 0
    v_cndmask_b32 {vr(SU+4)}, {vr(SU+5)}, {vr(SU+4)}, vcc
    v_mov_b32 {vr(V_Z2)}, 0
    v_mov_b32 {vr(V_Z2+1)}, 0
    """)
    for b in range(2):
        a(f"ds_write_b64 {vr(SU+4)}, {vr(SU+2,2)} offset:{b*BUF}")
    a.c("zero accumulators via MFMA")
    a("s_nop 1")
    for o in O:
        zero16(a, o)
    a.c("read lane parts (T0 = n, T1 = h)")
    a(f"""
    v_and_b32 {vr(T0)}, 31, {vr(V_LANE)}
    v_lshrrev_b32 {vr(T1)}, 5, {vr(V_LANE)}
    s_lshl_b32 s3, s{S_ROLE}, 9
    v_lshlrev_b32 {vr(V_KL)}, 4, {vr(T0)}
    v_lshl_add_u32 {vr(V_KL)}, {vr(T1)}, 12, {vr(V_KL)}
    v_add_u32 {vr(V_KL)}, s3, {vr(V_KL)}
    s_lshl_b32 s3, s{S_ROLE}, 8
    s_add_u32 s3, s3, {KB0}
    v_lshlrev_b32 {vr(V_KBL)}, 3, {vr(T0)}
    v_lshl_add_u32 {vr(V_KBL)}, {vr(T1)}, 11, {vr(V_KBL)}
    v_add_u32 {vr(V_KBL)}, s3, {vr(V_KBL)}
    """)
    a(f"""
    s_lshl_b32 s3, s{S_ROLE}, 5
    s_add_u32 s3, s3, s51
    v_add_u32 {vr(SU+6)}, s3, {vr(T0)}
    s_xor_b32 s3, s3, 32
    v_add_u32 {vr(SU+7)}, s3, {vr(T0)}
    v_lshlrev_b32 {vr(SU+8)}, 13, {vr(T1)}
    v_add_u32 {vr(SU+8)}, {QA0}, {vr(SU+8)}
    v_lshlrev_b32 {vr(SU+9)}, 12, {vr(T1)}
    v_add_u32 {vr(SU+9)}, {QB0}, {vr(SU+9)}
    v_lshl_add_u32 {vr(V_QAO)}, {vr(SU+6)}, 4, {vr(SU+8)}
    v_lshl_add_u32 {vr(V_QAE)}, {vr(SU+7)}, 4, {vr(SU+8)}
    v_lshl_add_u32 {vr(V_QBO)}, {vr(SU+6)}, 3, {vr(SU+9)}
    v_lshl_add_u32 {vr(V_QBE)}, {vr(SU+7)}, 3, {vr(SU+9)}
    """)
    a(f"""
    v_mul_u32_u24 {vr(SU+6)}, 40, {vr(SU+6)}
    v_lshl_add_u32 {vr(V_ST16)}, {vr(T1)}, 4, {vr(SU+6)}
    v_lshl_add_u32 {vr(V_ST8)}, {vr(T1)}, 24, {vr(SU+6)}
    s_mul_i32 s3, s{S_WAVE}, {RSLOT}
    s_add_u32 s3, s3, {XR}
    v_lshlrev_b32 {vr(SU+6)}, 4, {vr(V_LANE)}
    v_lshlrev_b32 {vr(SU+7)}, 2, {vr(V_LANE)}
    v_add_u32 {vr(V_SND)}, s3, {vr(SU+6)}
    v_add_u32 {vr(V_SND4)}, s3, {vr(SU+7)}
    s_xor_b32 s3, s{S_WAVE}, 4
    s_mul_i32 s3, s3, {RSLOT}
    s_add_u32 s3, s3, {XR}
    v_add_u32 {vr(V_RCV)}, s3, {vr(SU+6)}
    v_add_u32 {vr(V_RCV4)}, s3, {vr(SU+7)}
    """)
    a(f"""
    v_bfe_u32 {vr(T2)}, {vr(V_LANE)}, 2, 2
    v_lshl_add_u32 {vr(T2)}, {vr(T1)}, 3, {vr(T2)}
    v_mul_u32_u24 {vr(V_VL)}, 48, {vr(T2)}
    v_and_b32 {vr(T2)}, 3, {vr(V_LANE)}
    v_min_u32 {vr(SU+6)}, 1, {vr(T2)}
    v_add_u32 {vr(SU+6)}, 4, {vr(SU+6)}
    v_and_b32 {vr(SU+7)}, 16, {vr(V_LANE)}
    v_cmp_ne_u32 vcc, 0, {vr(SU+7)}
    s_mul_i32 s3, s{S_ROLE}, 1536
    s_add_u32 s3, s3, {VOFF}
    v_cndmask_b32 {vr(T2)}, {vr(T2)}, {vr(SU+6)}, vcc
    v_lshl_add_u32 {vr(V_VL)}, {vr(T2)}, 3, {vr(V_VL)}
    v_add_u32 {vr(V_VL)}, s3, {vr(V_VL)}
    v_mov_b32 {vr(V_IDX)}, 0xdddd
    v_mov_b32 {vr(V_KADDR)}, {vr(V_KL)}
    v_mov_b32 {vr(V_KBADDR)}, {vr(V_KBL)}
    v_mov_b32 {vr(V_VADDR)}, {vr(V_VL)}
    """)
    a.c("t -> scale (T3), bias pair -> plane QB1 row tid")
    BP = S[2] + 8
    a(f"""
    s_waitcnt lgkmcnt(0)
    s_and_b32 s46, s46, 2
    s_lshl_b32 s46, s46, 3
    s_lshr_b32 s{S_T}, s{S_T}, s46
    s_lshl_b32 s{S_T}, s{S_T}, 16
    v_mov_b32 {vr(T3)}, s{S_T}
    v_mul_f32 {vr(T3)}, 0x{LOG2E:08x}, {vr(T3)}
    v_or_b32 {vr(BP)}, 0x80000000, {vr(T3)}
    v_cvt_pk_bf16_f32 {vr(BP)}, {vr(BP)}, 0
    v_mov_b32 {vr(BP+1)}, 0
    s_mov_b32 s{S_QB0}, {QB0}
    v_lshl_add_u32 {vr(V_WA2)}, {vr(V_TID)}, 3, s{S_QB0}
    ds_write_b64 {vr(V_WA2)}, {vr(BP,2)} offset:{QB1-QB0}
    s_cmp_lg_u32 s{S_ROLE}, 0
    s_cbranch_scc1 L_proV
    """)
    a.c("K role: stage K chunk 0")
    a(f"""
    v_mov_b32 {vr(V_WA)}, {vr(V_WL)}
    v_mov_b32 {vr(V_WA2)}, {vr(V_WL2)}
    """)
    t3(a, 1)
    a("s_waitcnt vmcnt(0)")
    t3(a, 2)
    emit_stage_compute_K(a)
    t3(a, 3)
    t3(a, 4)
    a("s_branch L_proE")
    a.label("L_proV")
    a.c("V role: Q first half, then V chunk 0")
    t3(a, 1)
    if H1EARLY:
        a("s_waitcnt vmcnt(6)")
        t3(a, 2)
    else:
        a("s_waitcnt vmcnt(3)")
        t3(a, 2)
        q_loads(a, QR2, 1)
    q_norm_write(a, QR, QU, 0)
    t3(a, 3)
    a(f"""
    v_mov_b32 {vr(V_WA)}, {vr(V_WL)}
    s_waitcnt vmcnt(3)
    """)
    t3(a, 4)
    emit_stage_compute_V(a)
    a.label("L_proE")
    a(f"""
    s_and_b32 s3, s{S_T}, 0x7fffffff
    s_waitcnt lgkmcnt(0)
    {"s_memtime s[90:91]" if DBG3 else ""}
    s_barrier
    {"s_memtime s[92:93]" if DBG3 else ""}
    s_cmp_gt_u32 s3, 0x41800000
    s_cbranch_scc1 L_fallback
    """)
    a.label("L_go")
    if _ps in ("y1", "o1"):
        a(f"s_cmp_eq_u32 s{S_ROLE}, {0 if _ps == 'y1' else 1}")
        a("s_cbranch_scc1 L_noprio")
        a("s_setprio 1")
        a.label("L_noprio")
    k_reads(a, 0, 0)
    q_reads(a, 0)
    q_reads(a, 1)
    k_reads(a, 1, 1)
    v_reads(a, 0, 0)
    a("s_waitcnt lgkmcnt(8)")
    for m in qk(S[0], 0, 0): a(m)
    a("s_waitcnt lgkmcnt(6)")
    for m in qk(S[1], 0, 1): a(m)
    a("s_nop 7")
    ts(a, 1)

    kf = [("c0", 0), ("c0", 1)]
    vf = [("c0", 0), None]
    def peel(order, cur, prev, nxt, kread_at, vread_at, pre, hooks_all, mf_pos=None):
        for p in range(16):
            a.c(f"phase {cur} p={p} tile={order[p]}")
            ps_ = opt("priof" if cur == "c0" else "priol", "-"*16)
            if ps_[p] != "-":
                a(f"s_setprio {ps_[p]}")
            a("s_waitcnt lgkmcnt(0)")
            for x in pre.get(p, []): a(x)
            hooks = {k: list(v) for k, v in hooks_all.get(p, {}).items()}
            if p in vread_at:
                c, m = vread_at[p]
                v_reads(a, m % 2, m)
                vf[m % 2] = (c, m)
            tight = False
            if p in kread_at:
                ent = kread_at[p]
                c, m = ent[0], ent[1]
                if len(ent) > 2:
                    hooks.setdefault(ent[2], []).extend(cap(k_reads, m % 2, m))
                else:
                    k_reads(a, m % 2, m)
                kf[m % 2] = (c, m)
                knew = (p, m % 2)
            else:
                knew = None
            items = []
            if p == 0:
                pt = None if prev is None else (prev, 3, 3)
            else:
                pt = (cur,) + order[p-1]
            pos = (mf_pos or {}).get(p, [0, 4, 8, 12])
            if pt is not None:
                c, m, r = pt
                assert vf[m % 2] == (c, m), (cur, p, vf, pt)
                assert not (p in vread_at and vread_at[p][1] % 2 == m % 2), (cur, p)
                P = pv(O[r], m % 2, S[(p-1) % 4])
                items += [(pos[0], P[0]), (pos[1], P[1])]
            if p + 2 < 16:
                qt = (cur,) + order[p+2]
            elif nxt is not None:
                qt = (nxt, 0, p + 2 - 16)
            else:
                qt = None
            if qt is not None:
                c, m, r = qt
                assert kf[m % 2] == (c, m), (cur, p, kf, qt)
                if knew is not None and knew[1] == m % 2:
                    hooks.setdefault(pos[2], []).insert(0, "s_waitcnt lgkmcnt(0)")
                Qk = qk(S[(p+2) % 4], m % 2, r)
                items += [(pos[2], Qk[0]), (pos[3], Qk[1])]
            items2 = []
            for e in range(17):
                w = [x for x in hooks.get(e, []) if x.startswith("s_waitcnt")]
                if w and any(pe == e for pe, _ in items):
                    for x in w:
                        items2.append((e, x)); hooks[e].remove(x)
            phase2(a, S[p % 4], items2 + items, hooks)

    pre = {}; hk = {}
    uid[0] += 1
    hk[0] = {int(opt("c1e", "4")): [f"s_mov_b32 s{S_GOFF}, {CH*40}"] + cap(emit_stage_loads)}
    H1P = int(opt("h1p", "5"))
    s = Sub()
    s(f"s_cmp_eq_u32 s{S_ROLE}, 0")
    s("s_cbranch_scc1 L_skipH1n")
    s("s_waitcnt vmcnt(3)")
    if DBG3: s("s_memtime s[94:95]")
    q_norm_write(s, QR2, SU, 1)
    pre[H1P] = (["s_memtime s[64:65]", "s_memtime s[94:95]"] if DBG3 else []) + s.l + ["L_skipH1n:"]
    pre[6] = ["s_barrier"] + (["s_memtime s[96:97]"] if DBG3 else []) + cap(q_reads, 2) + cap(q_reads, 3)
    hk[6] = {8: ["s_waitcnt lgkmcnt(6)"]}
    C1P = int(opt("c1p", "9"))
    s = Sub()
    class LA(Sub):
        def label(self, x): self.l.append(x + ":")
    s = LA()
    emit_stage_write(s, BUF)
    s(f"s_mov_b32 s{S_GOFF}, {2*CH*40}")
    emit_stage_loads(s)
    pre[C1P] = s.l
    hk[13] = {8: ["s_waitcnt lgkmcnt(0)", "s_barrier",
                  f"v_add_u32 {vr(V_KADDR)}, {BUF}, {vr(V_KL)}", f"v_add_u32 {vr(V_KBADDR)}, {BUF}, {vr(V_KBL)}"]}
    pre[15] = [f"v_add_u32 {vr(V_VADDR)}, {BUF}, {vr(V_VL)}"]
    kr = {1: ("c0", 2), 3: ("c0", 3), 5: ("c0", 0), 7: ("c0", 1), 9: ("c0", 2), 11: ("c0", 3), 13: ("c1", 0, 8)}
    vrd = {2: ("c0", 1), 4: ("c0", 2), 6: ("c0", 3), 8: ("c0", 0), 10: ("c0", 1), 12: ("c0", 2), 13: ("c0", 3), 15: ("c1", 0)}
    _call = Asm.__call__
    def call2(self, s_):
        for x in s_.strip("\n").split("\n"):
            x = x.strip()
            if not x: continue
            if x.endswith(":"): self.l.append(x)
            else: self.l.append("  " + x)
    Asm.__call__ = call2
    peel(ORDER_F, "c0", None, "c1", kr, vrd, pre, hk)
    a(f"""
    s_mov_b32 s{S_RN}, 0
    s_mov_b32 s{S_CNT}, {NCH-2}
    {"s_memtime s[98:99]" if DBG3 else ""}
    """)
    if opt("align"):
        a.l.append(f".p2align {opt('align')}")
    a.label("L_loop")
    for m in range(4):
        for i in range(4):
            if i == 0:
                a("s_waitcnt lgkmcnt(0)")
                if m == 3:
                    a("s_barrier")
                    a(f"v_add_u32 {vr(V_KADDR)}, s{S_RN}, {vr(V_KL)}")
                    a(f"v_add_u32 {vr(V_KBADDR)}, s{S_RN}, {vr(V_KBL)}")
                k_reads(a, (m+1) % 2, (m+1) % 4)
            if PRIO.get((m, i)) is not None:
                a(f"s_setprio {PRIO[(m, i)]}")
            if i == 2:
                a("s_waitcnt lgkmcnt(0)")
                if m == 3:
                    a(f"v_add_u32 {vr(V_VADDR)}, s{S_RN}, {vr(V_VL)}")
                v_reads(a, (m+1) % 2, (m+1) % 4)
            if m == STG_M and i == STG_I:
                u = "L_skipst"
                emit_stage_write(a, f"s{S_RN}")
                a(f"s_add_u32 s{S_GOFF}, s{S_GOFF}, {CH*40}")
                a(f"s_cmp_eq_u32 s{S_CNT}, 1")
                a(f"s_cbranch_scc1 {u}")
                emit_stage_loads(a)
                a.label(u)
            P = pv(O[(i-1) % 4], (m-1) % 2 if i == 0 else m % 2, S[(i-1) % 4])
            Qk = qk(S[(i+2) % 4], (m+1) % 2 if i >= 2 else m % 2, (i+2) % 4)
            phase(a, S[i], P + Qk)
    a(f"""
    s_xor_b32 s{S_RN}, s{S_RN}, {BUF}
    s_sub_u32 s{S_CNT}, s{S_CNT}, 1
    s_cmp_lg_u32 s{S_CNT}, 0
    s_cbranch_scc1 L_loop
    """)
    kf[:] = [("cl", 0), ("cp", 3)]
    vf[:] = [("cl", 0), ("cp", 3)]
    pre = {}; hk = {}
    PX = SU
    X1S = int(opt("x1s", "8"))
    hk[X1S] = {}
    spread(hk[X1S], send(0), 4, 10)
    pre[X1S+1] = ["s_barrier"] + recv(0, PX)
    f1 = finalize(1, PX, T2)
    hk[X1S+2] = {}; hk[X1S+3] = {}
    half = len(f1) // 2
    spread(hk[X1S+2], f1[:half], 1, 15)
    spread(hk[X1S+3], f1[half:], 1, 15)
    hk[14] = {}
    spread(hk[14], send(2), 14, 16)
    pre[15] = ["s_barrier"] + recv(1, PX)
    Pl = pv(O[3], 1, S[3])
    hk[15] = {9: ["s_nop 1", Pl[0]]} if not opt("nosplit") else {}
    if DBG2 and not DBG3:
        pre[12] = ["s_memtime s[64:65]", "s_memrealtime s[78:79]"]
    kr = {0: ("cl", 1), 1: ("cl", 2), 3: ("cl", 3), 5: ("cl", 0), 7: ("cl", 1), 9: ("cl", 2), 10: ("cl", 3)}
    vrd = {2: ("cl", 1), 4: ("cl", 2), 6: ("cl", 3), 8: ("cl", 0), 10: ("cl", 1), 12: ("cl", 2), 13: ("cl", 3)}
    mfp = {14: [0, 2, 8, 12], 15: [0, 2, 8, 12]}
    peel(ORDER_L, "cl", "cp", None, kr, vrd, pre, hk, mfp)
    a("s_nop 1")
    if opt("nosplit"): a(Pl[0])
    a(Pl[1])
    a("s_waitcnt lgkmcnt(0)")
    a("s_nop 7\ns_nop 3")
    for x in finalize(3, PX, T2): a(x)
    if DBG3:
        a(f"""
        s_waitcnt vmcnt(0)
        s_memtime s[66:67]
        s_waitcnt lgkmcnt(0)
        s_and_b32 s3, s{S_WAVE}, 3
        s_cmp_lg_u32 s3, {opt("dbgw", "0")}
        s_cbranch_scc1 L_end
        s_lshl_b32 s3, s2, 7
        s_lshl_b32 s4, s{S_ROLE}, 6
        s_add_u32 s3, s3, s4
        v_mov_b32 v0, s3
        v_mov_b32 v2, s60
        v_mov_b32 v3, s80
        v_mov_b32 v4, s82
        v_mov_b32 v5, s84
        v_mov_b32 v6, s86
        v_mov_b32 v7, s88
        v_mov_b32 v8, s90
        v_mov_b32 v9, s92
        v_mov_b32 v10, s62
        v_mov_b32 v11, s64
        v_mov_b32 v12, s94
        v_mov_b32 v13, s96
        v_mov_b32 v14, s98
        v_mov_b32 v15, s66
        v_mov_b32 v16, 0
        v_mov_b32 v17, 0
        s_mov_b64 exec, 1
        global_store_dwordx4 v0, v[2:5], s[58:59]
        global_store_dwordx4 v0, v[6:9], s[58:59] offset:16
        global_store_dwordx4 v0, v[10:13], s[58:59] offset:32
        global_store_dwordx4 v0, v[14:17], s[58:59] offset:48
        """)
    elif DBG2:
        a(f"""
        s_waitcnt vmcnt(0)
        s_memtime s[66:67]
        s_memrealtime s[72:73]
        s_waitcnt lgkmcnt(0)
        s_cmp_lg_u32 s{S_WAVE}, 0
        s_cbranch_scc1 L_end
        s_lshl_b32 s3, s2, 5
        v_mov_b32 v0, s3
        v_mov_b32 v2, s60
        v_mov_b32 v3, s62
        v_mov_b32 v4, s64
        v_mov_b32 v5, s66
        v_mov_b32 v6, s70
        v_mov_b32 v7, s72
        v_mov_b32 v8, s76
        v_mov_b32 v9, s78
        s_mov_b64 exec, 1
        global_store_dwordx4 v0, v[2:5], s[58:59]
        global_store_dwordx4 v0, v[6:9], s[58:59] offset:16
        """)
    a.label("L_end")
    a("s_endpgm")
    a.label("L_fallback")
    MX = [V_QOFF, V_FB1, V_KADDR, V_KBADDR]
    FK, FKB = V_VADDR, T3
    a(f"""
    s_cmp_eq_u32 s{S_ROLE}, 0
    s_cbranch_scc1 L_fb_skipH1
    s_waitcnt vmcnt(0)
    """)
    q_norm_write(a, QR2, SU, 1)
    a.label("L_fb_skipH1")
    a(f"""
    s_waitcnt vmcnt(0) lgkmcnt(0)
    s_barrier
    s_mov_b32 s{S_GOFF}, 0
    s_mov_b32 s{S_CNT}, {NCH}
    """)
    for i in range(4):
        q_reads(a, i)
    for i in range(4):
        a(f"v_mov_b32 {vr(MX[i])}, 0xff800000")
    a("s_waitcnt lgkmcnt(0)")
    a.label("L_fb_chunk")
    emit_stage_loads(a)
    emit_stage_write(a, 0)
    a(f"""
    s_waitcnt lgkmcnt(0)
    s_barrier
    v_and_b32 {vr(T0)}, 31, {vr(V_LANE)}
    v_lshrrev_b32 {vr(T1)}, 5, {vr(V_LANE)}
    v_lshlrev_b32 {vr(FK)}, 4, {vr(T0)}
    v_lshl_add_u32 {vr(FK)}, {vr(T1)}, 12, {vr(FK)}
    v_lshlrev_b32 {vr(FKB)}, 3, {vr(T0)}
    v_lshl_add_u32 {vr(FKB)}, {vr(T1)}, 11, {vr(FKB)}
    v_add_u32 {vr(FKB)}, {KB0}, {vr(FKB)}
    s_mov_b32 s3, 8
    """)
    a.label("L_fb_tile")
    k_reads(a, 0, 0, FK, FKB)
    a("s_waitcnt lgkmcnt(0)")
    for i in range(4):
        for x in qk(S[i], 0, i): a(x)
    a("s_nop 7\ns_nop 7")
    for i in range(4):
        for r in range(0, 16, 2):
            a(f"v_max3_f32 {vr(MX[i])}, {vr(S[i]+r)}, {vr(S[i]+r+1)}, {vr(MX[i])}")
    a(f"""
    v_add_u32 {vr(FK)}, 512, {vr(FK)}
    v_add_u32 {vr(FKB)}, 256, {vr(FKB)}
    s_sub_u32 s3, s3, 1
    s_cmp_lg_u32 s3, 0
    s_cbranch_scc1 L_fb_tile
    s_barrier
    s_add_u32 s{S_GOFF}, s{S_GOFF}, {CH*40}
    s_sub_u32 s{S_CNT}, s{S_CNT}, 1
    s_cmp_lg_u32 s{S_CNT}, 0
    s_cbranch_scc1 L_fb_chunk
    """)
    a(f"""
    v_lshlrev_b32 {vr(T3)}, 3, {vr(V_TID)}
    v_add_u32 {vr(T3)}, {QB1}, {vr(T3)}
    ds_read_b32 {vr(SU)}, {vr(T3)}
    s_waitcnt lgkmcnt(0)
    v_lshlrev_b32 {vr(SU)}, 16, {vr(SU)}
    s_barrier
    """)
    for i in range(4):
        Ox = MX[i]
        at = V_QBE if (i & 1) == 0 else V_QBO
        a(f"""
        v_mov_b32 {vr(T1)}, {vr(Ox)}
        s_nop 1
        v_permlane32_swap_b32 {vr(Ox)}, {vr(T1)}
        s_nop 1
        v_max_f32 {vr(T0)}, {vr(Ox)}, {vr(T1)}
        v_sub_f32 {vr(T0)}, {vr(SU)}, {vr(T0)}
        v_cvt_pk_bf16_f32 {vr(T1)}, {vr(T0)}, 0
        v_lshlrev_b32 {vr(T2)}, 16, {vr(T1)}
        v_sub_f32 {vr(T2)}, {vr(T0)}, {vr(T2)}
        v_cvt_pk_bf16_f32 {vr(SU+2)}, {vr(T0)}, {vr(T2)}
        v_mov_b32 {vr(SU+3)}, 0
        v_or_b32 {vr(SU+4)}, 0x1000, {vr(at)}
        ds_write_b64 {vr(SU+4)}, {vr(SU+2,2)} offset:{(i >> 1) * 512}
        """)
    a(f"s_mov_b32 s{S_GOFF}, 0")
    emit_stage_loads(a)
    emit_stage_write(a, 0)
    q_off(a)
    a(f"""
    s_cmp_eq_u32 s{S_ROLE}, 0
    s_cbranch_scc1 L_fb_skipH1l
    """)
    q_loads(a, QR2, 1)
    a.label("L_fb_skipH1l")
    a(f"""
    v_mov_b32 {vr(T3)}, s{S_T}
    v_mul_f32 {vr(T3)}, 0x{LOG2E:08x}, {vr(T3)}
    v_mov_b32 {vr(V_KADDR)}, {vr(V_KL)}
    v_mov_b32 {vr(V_KBADDR)}, {vr(V_KBL)}
    v_mov_b32 {vr(V_VADDR)}, {vr(V_VL)}
    s_waitcnt lgkmcnt(0)
    s_barrier
    s_branch L_go
    """)
    ftr = f"""
.section .rodata,"a"
.p2align 6
.amdhsa_kernel {name}
  .amdhsa_next_free_vgpr {NV}
  .amdhsa_next_free_sgpr 102
  .amdhsa_accum_offset {ACC_OFF}
  .amdhsa_group_segment_fixed_size 0
  .amdhsa_kernarg_size 56
  .amdhsa_user_sgpr_count 2
  .amdhsa_user_sgpr_kernarg_segment_ptr 1
  .amdhsa_system_sgpr_workgroup_id_x 1
.end_amdhsa_kernel
"""
    return hdr + a.text() + ftr

if __name__ == "__main__":
    av = [x for x in sys.argv[1:] if not x.startswith("--")]
    out = av[0] if av else "v4.s"
    open(out, "w").write(gen())
```

```python
import sys

class Asm:
    def __init__(self):
        self.l = []
    def __call__(self, s):
        for x in s.strip("\n").split("\n"):
            x = x.strip()
            if x:
                self.l.append("  " + x)
    def label(self, s):
        self.l.append(s + ":")
    def c(self, s):
        self.l.append("  ; " + s)
    def text(self):
        return "\n".join(self.l) + "\n"

def vr(a, n=1):
    return f"v{a}" if n == 1 else f"v[{a}:{a+n-1}]"

class R:
    def __init__(self, kind, idx):
        self.kind, self.idx = kind, idx
    def r(self, n=1, off=0):
        a = self.idx + off
        return f"{self.kind}{a}" if n == 1 else f"{self.kind}[{a}:{a+n-1}]"
    def o(self, off):
        return R(self.kind, self.idx + off)

OPT = {}
for _x in sys.argv[1:]:
    if _x.startswith("--"):
        k, _, v = _x[2:].partition("=")
        OPT[k] = v if v else "1"
def opt(k, d=None): return OPT.get(k, d)

CH = 256
NCH = 2048 // CH
KA0, KA1, KB0, KB1, VOFF = 0, 4096, 8192, 10240, 12288
BUF = 24576
XR = 2 * BUF
QA0, QA1, QB0, QB1 = XR, XR + 8192, XR + 16384, XR + 20480
RSLOT = 6656
LDS = XR + 8 * RSLOT
HEADB = 2048 * 40
V_TID, V_LANE = 0, 1
V_KADDR, V_KBADDR, V_VADDR = 2, 3, 4
V_KL, V_KBL, V_VL = 5, 6, 7
V_GOFF, V_WL, V_WL2, V_WA, V_WA2 = 8, 9, 10, 11, 12
V_QOFF = 13
T0, T1, T2, T3 = 14, 15, 16, 17
V_IDX = 18
V_FB1 = 19
V_QAE, V_QAO, V_QBE, V_QBO = 20, 21, 22, 23
V_SND, V_SND4, V_RCV, V_RCV4, V_ST16, V_ST8 = 24, 25, 26, 27, 28, 29
V_Z2 = 30
SB = 32
S = [SB, SB + 16, SB + 32, SB + 48]
AG = opt("agpr", "")
_v = SB + 64
_a = 0
def alloc(n, kind):
    global _v, _a
    if kind == "a":
        r = R("a", _a); _a += n
    else:
        r = R("v", _v); _v += n
    return r
ST = alloc(10, "v").idx
SU = alloc(20, "v").idx
QR2 = alloc(10, "v").idx
_v = (_v + 3) // 4 * 4
O = [alloc(16, "a" if "O" in AG else "v") for _ in range(4)]
Q = []
for _i in range(4):
    _m = alloc(4, "a" if "Q" in AG else "v"); _t = alloc(2, "a" if "Q" in AG else "v")
    Q.append((_m, _t))
KF = []
for _i in range(2):
    _m = alloc(4, "a" if "K" in AG else "v"); _t = alloc(2, "a" if "K" in AG else "v")
    KF.append((_m, _t))
VF = [alloc(8, "a" if "V" in AG else "v") for _ in range(2)]
ACC_OFF = (_v + 3) // 4 * 4
NV = ACC_OFF + _a
assert NV <= 256, NV

S_WAVE, S_ROLE, S_BH, S_QB = 32, 33, 30, 31
S_RN = 42
S_GOFF = 43
S_CNT = 44
S_T = 34
S_QROW = 50
S_QB0 = 52
SRD_K, SRD_V, SRD_Q, SRD_O, SRD_S = 8, 12, 4, 16, 36

LOG2E = 0x3fb8aa3b
STG_M = int(opt("stgm", "1"))
STG_I = int(opt("stgi", "1"))

def norm_row(a, RAW, UN, scale=None):
    a(f"v_dot2_f32_bf16 {vr(T0)}, {vr(RAW)}, {vr(RAW)}, 0")
    a(f"v_dot2_f32_bf16 {vr(T1)}, {vr(RAW+1)}, {vr(RAW+1)}, 0")
    for i in range(2, 10, 2):
        a(f"v_dot2_f32_bf16 {vr(T0)}, {vr(RAW+i)}, {vr(RAW+i)}, {vr(T0)}")
        a(f"v_dot2_f32_bf16 {vr(T1)}, {vr(RAW+i+1)}, {vr(RAW+i+1)}, {vr(T1)}")
    for i in range(2):
        a(f"v_lshlrev_b32 {vr(UN+2*i)}, 16, {vr(RAW+i)}")
        a(f"v_and_b32 {vr(UN+2*i+1)}, 0xffff0000, {vr(RAW+i)}")
    a(f"v_add_f32 {vr(T0)}, {vr(T0)}, {vr(T1)}")
    a(f"v_sqrt_f32 {vr(T0)}, {vr(T0)}")
    for i in range(2, 5):
        a(f"v_lshlrev_b32 {vr(UN+2*i)}, 16, {vr(RAW+i)}")
        a(f"v_and_b32 {vr(UN+2*i+1)}, 0xffff0000, {vr(RAW+i)}")
    a(f"v_add_f32 {vr(T0)}, 0x358637bd, {vr(T0)}")
    a(f"v_rcp_f32 {vr(T2)}, {vr(T0)}")
    for i in range(5, 10):
        a(f"v_lshlrev_b32 {vr(UN+2*i)}, 16, {vr(RAW+i)}")
        a(f"v_and_b32 {vr(UN+2*i+1)}, 0xffff0000, {vr(RAW+i)}")
    if scale is not None:
        a(f"v_mul_f32 {vr(T2)}, {vr(T2)}, {vr(scale)}")
        a("s_nop 0")
    for i in range(10):
        a(f"v_pk_mul_f32 {vr(UN+2*i,2)}, {vr(UN+2*i,2)}, {vr(T2,2)} op_sel_hi:[1,0]")
    for i in range(10):
        a(f"v_cvt_pk_bf16_f32 {vr(RAW+i)}, {vr(UN+2*i)}, {vr(UN+2*i+1)}")

def emit_stage_compute_K(a):
    norm_row(a, ST, SU)
    a(f"ds_write_b128 {vr(V_WA)}, {vr(ST,4)} offset:{KA0}")
    a(f"ds_write_b128 {vr(V_WA)}, {vr(ST+4,4)} offset:{KA1}")
    a(f"ds_write_b64 {vr(V_WA2)}, {vr(ST+8,2)} offset:{KB0}")

def emit_stage_compute_V(a):
    a(f"ds_write_b128 {vr(V_WA)}, {vr(ST,4)} offset:{VOFF}")
    a(f"ds_write_b128 {vr(V_WA)}, {vr(ST+4,4)} offset:{VOFF+16}")
    a(f"ds_write_b64 {vr(V_WA)}, {vr(ST+8,2)} offset:{VOFF+32}")

def emit_stage_loads(a):
    a(f"buffer_load_dwordx4 {vr(ST,4)}, {vr(V_GOFF)}, s[{SRD_S}:{SRD_S+3}], s{S_GOFF} offen")
    a(f"buffer_load_dwordx4 {vr(ST+4,4)}, {vr(V_GOFF)}, s[{SRD_S}:{SRD_S+3}], s{S_GOFF} offen offset:16")
    a(f"buffer_load_dwordx2 {vr(ST+8,2)}, {vr(V_GOFF)}, s[{SRD_S}:{SRD_S+3}], s{S_GOFF} offen offset:32")

uid = [0]
def emit_stage_write(a, wb, vm=0):
    uid[0] += 1
    u = uid[0]
    a(f"v_add_u32 {vr(V_WA)}, {wb}, {vr(V_WL)}")
    a(f"v_add_u32 {vr(V_WA2)}, {wb}, {vr(V_WL2)}")
    a(f"s_waitcnt vmcnt({vm})")
    a(f"s_cmp_lg_u32 s{S_ROLE}, 0")
    a(f"s_cbranch_scc1 L_stV{u}")
    emit_stage_compute_K(a)
    a(f"s_branch L_stE{u}")
    a.label(f"L_stV{u}")
    emit_stage_compute_V(a)
    a.label(f"L_stE{u}")

def k_reads(a, buf, m, ka=V_KADDR, kb=V_KBADDR, stride=2):
    mm, t = KF[buf]
    a(f"ds_read_b128 {mm.r(4)}, {vr(ka)} offset:{m*512*stride}")
    a(f"ds_read_b64 {t.r(2)}, {vr(kb)} offset:{m*256*stride}")

def v_reads(a, buf, m):
    for j in range(2):
        for half in range(2):
            off = (m*64 + 16*j + 4*half) * 48
            a(f"ds_read_b64_tr_b16 {VF[buf].r(2, 4*j + 2*half)}, {vr(V_VADDR)} offset:{off}")

def q_reads(a, i):
    Qm, Qt = Q[i]
    am, at = (V_QAE, V_QBE) if (i & 1) == 0 else (V_QAO, V_QBO)
    a(f"ds_read_b128 {Qm.r(4)}, {vr(am)} offset:{(i >> 1) * 1024}")
    a(f"ds_read_b64 {Qt.r(2)}, {vr(at)} offset:{(i >> 1) * 512}")

def qk(Sx, kbuf, qi):
    m, t = KF[kbuf]
    Qm, Qt = Q[qi]
    return [f"v_mfma_f32_32x32x8_bf16 {vr(Sx,16)}, {t.r(2)}, {Qt.r(2)}, 0",
            f"v_mfma_f32_32x32x16_bf16 {vr(Sx,16)}, {m.r(4)}, {Qm.r(4)}, {vr(Sx,16)}"]

def pv(Ox, vbuf, Sx):
    return [f"v_smfmac_f32_32x32x32_bf16 {Ox.r(16)}, {VF[vbuf].r(4, 4*j)}, {vr(Sx+8*j,8)}, {vr(V_IDX)}" for j in range(2)]

def phase(a, Sx, mfmas, hooks=None):
    n = len(mfmas)
    per = [16 // n + (1 if i < 16 % n else 0) for i in range(n)]
    e = 0
    for g in range(n):
        a(mfmas[g])
        for _ in range(per[g]):
            if hooks and e in hooks:
                for x in hooks[e]: a(x)
            a(f"v_exp_f32 {vr(Sx+e)}, {vr(Sx+e)}")
            e += 1

DBG4 = bool(opt("dbg4"))
DBGH = bool(opt("dbgh"))
DBG2 = bool(opt("dbg2")) or bool(opt("dbg3")) or DBGH
def ts(a, i):
    if DBG2:
        a(f"s_memtime s[{60+2*i}:{61+2*i}]")
        a(f"s_memrealtime s[{74+2*i}:{75+2*i}]")

def t4(a, first=False):
    if not DBG4: return
    uid[0] += 1
    u = uid[0]
    if not first:
        a("s_memtime s[64:65]\ns_memrealtime s[66:67]")
    a(f"""
    s_waitcnt lgkmcnt(0)
    s_cmp_lg_u32 s{S_WAVE}, 0
    s_cbranch_scc1 L_t4_{u}
    v_mov_b32 {vr(T0)}, s64
    v_mov_b32 {vr(T1)}, s66
    v_mov_b32 {vr(T2)}, s68
    s_mov_b64 exec, 1
    global_store_dwordx2 {vr(T2)}, {vr(T0,2)}, s[58:59]
    s_mov_b64 exec, -1
    s_nop 4
    """)
    a.label(f"L_t4_{u}")
    a("s_add_u32 s68, s68, 8")

DBG3 = bool(opt("dbg3"))
def t3(a, k):
    if DBG3:
        a(f"s_memtime s[{80+2*k}:{81+2*k}]")

def zero16(a, Rx):
    a(f"v_mfma_f32_32x32x8_bf16 {Rx.r(16)}, {vr(V_Z2,2)}, {vr(V_Z2,2)}, 0")


STF = opt('stf', '').replace('+', ' ')

def send(r):
    o = (r >> 1) * 3328
    l = [f"ds_write_b128 {vr(V_SND)}, {O[r].r(4, 4*k)} offset:{o + 1024*k}" for k in range(3)]
    l.append(f"ds_write_b32 {vr(V_SND4)}, {O[r].r(1, 12)} offset:{o + 3072}")
    return l

def recv(slot, P):
    o = slot * 3328
    l = [f"ds_read_b128 {vr(P+4*k,4)}, {vr(V_RCV)} offset:{o + 1024*k}" for k in range(3)]
    l.append(f"ds_read_b32 {vr(P+12)}, {vr(V_RCV4)} offset:{o + 3072}")
    return l

def finalize(r, P, TT):
    Ox = O[r]
    assert Ox.kind == "v"
    l = []
    src = lambda i, n=1: Ox.r(n, i)
    l.append(f"v_add_f32 {vr(TT)}, {src(12)}, {vr(P+12)}")
    l.append(f"v_rcp_f32 {vr(TT)}, {vr(TT)}")
    for i in range(0, 12, 2):
        l.append(f"v_pk_add_f32 {vr(P+i,2)}, {vr(P+i,2)}, {src(i,2)}")
    for i in range(0, 12, 2):
        l.append(f"v_pk_mul_f32 {vr(P+i,2)}, {vr(P+i,2)}, {vr(TT,2)} op_sel_hi:[1,0]")
    for i in range(6):
        l.append(f"v_cvt_pk_bf16_f32 {vr(P+i)}, {vr(P+2*i)}, {vr(P+2*i+1)}")
    l.append("s_nop 1")
    l.append(f"v_permlane32_swap_b32 {vr(P)}, {vr(P+2)}")
    l.append(f"v_permlane32_swap_b32 {vr(P+1)}, {vr(P+3)}")
    l.append("s_nop 1")
    o = (r >> 1) * 64 * 40
    l.append(f"buffer_store_dwordx4 {vr(P,4)}, {vr(V_ST16)}, s[{SRD_O}:{SRD_O+3}], 0 offen offset:{o} {STF}")
    l.append(f"buffer_store_dwordx2 {vr(P+4,2)}, {vr(V_ST8)}, s[{SRD_O}:{SRD_O+3}], 0 offen offset:{o+32} {STF}")
    return l

def q_loads(a, R, half):
    o = half * 64 * 40
    a(f"buffer_load_dwordx4 {vr(R,4)}, {vr(V_QOFF)}, s[{SRD_Q}:{SRD_Q+3}], 0 offen offset:{o}")
    a(f"buffer_load_dwordx4 {vr(R+4,4)}, {vr(V_QOFF)}, s[{SRD_Q}:{SRD_Q+3}], 0 offen offset:{o+16}")
    a(f"buffer_load_dwordx2 {vr(R+8,2)}, {vr(V_QOFF)}, s[{SRD_Q}:{SRD_Q+3}], 0 offen offset:{o+32}")

def q_off(a):
    a(f"""
    v_and_b32 {vr(V_QOFF)}, 0xc0, {vr(V_TID)}
    v_lshl_add_u32 {vr(V_QOFF)}, {vr(V_QOFF)}, 1, {vr(V_LANE)}
    v_mul_u32_u24 {vr(V_QOFF)}, 40, {vr(V_QOFF)}
    """)

def q_norm_write(a, R, U, half):
    a(f"""
    v_and_b32 {vr(V_WA2)}, 0xc0, {vr(V_TID)}
    v_lshl_add_u32 {vr(V_WA2)}, {vr(V_WA2)}, 1, {vr(V_LANE)}
    v_lshlrev_b32 {vr(V_WA)}, 4, {vr(V_WA2)}
    v_lshl_add_u32 {vr(V_WA2)}, {vr(V_WA2)}, 3, s{S_QB0}
    """)
    norm_row(a, R, U, scale=T3)
    a(f"""
    ds_write_b128 {vr(V_WA)}, {vr(R,4)} offset:{QA0 + half*1024}
    ds_write_b128 {vr(V_WA)}, {vr(R+4,4)} offset:{QA1 + half*1024}
    ds_write_b64 {vr(V_WA2)}, {vr(R+8,2)} offset:{half*512}
    """)

def phase2(a, Sx, items, hooks=None):
    for e in range(17):
        for (pe, ins) in items:
            if pe == e: a(ins)
        if hooks and e in hooks:
            for x in hooks[e]: a(x)
        if e < 16:
            a(f"v_exp_f32 {vr(Sx+e)}, {vr(Sx+e)}")

ORDER_F = [(m, r) for hf in range(2) for m in range(4) for r in (2*hf, 2*hf+1)]
ORDER_L = ORDER_F[:12] + [(2, 2), (3, 2), (2, 3), (3, 3)]

def spread(hooks, lst, e0, e1):
    n = e1 - e0 + 1
    for k, ins in enumerate(lst):
        e = e0 + (k * n) // len(lst)
        hooks.setdefault(e, []).append(ins)

class Sub:
    def __init__(self): self.l = []
    def __call__(self, s):
        for x in s.strip("\n").split("\n"):
            x = x.strip()
            if x: self.l.append(x)
def cap(fn, *args, **kw):
    s = Sub(); fn(s, *args, **kw); return s.l

PRIO = {}
_ps = opt("prio", "")
if _ps and _ps[0] in "0123" :
    for _k, _ch in enumerate(_ps):
        if _ch != "-":
            PRIO[((3 + _k // 4) % 4, _k % 4)] = int(_ch)

def gen():
    a = Asm()
    dbg_head = "s_memtime s[60:61]\ns_memrealtime s[70:71]\ns_load_dwordx2 s[58:59], s[0:1], " + ("40" if DBGH else "48") if DBG2 else ""
    name = "standalone__qk_norm__prompt_kernel"
    hdr = f"""; qk-norm attention, hand-written generator (gen/gen4.py)
; @launch grid=(256,1,1) block=(512,1,1) lds={LDS}
.amdgcn_target "amdgcn-amd-amdhsa--gfx950"
.text
.globl {name}
.p2align 8
.type {name},@function
{name}:
"""
    QR = S[0]
    QU = S[1]
    H1EARLY = bool(opt("h1early"))
    a(f"""
    s_cmp_ge_u32 s2, 256
    s_cbranch_scc1 L_end
    {dbg_head}
    s_load_dwordx4 s[20:23], s[0:1], 0
    s_load_dwordx4 s[24:27], s[0:1], 16
    s_load_dwordx2 s[28:29], s[0:1], 32
    s_and_b32 s{S_BH}, s2, 7
    s_lshr_b32 s3, s2, 5
    s_lshl_b32 s3, s3, 3
    s_add_u32 s{S_BH}, s{S_BH}, s3
    s_lshr_b32 s{S_QB}, s2, 3
    s_and_b32 s{S_QB}, s{S_QB}, 3
    v_and_b32 {vr(V_LANE)}, 63, {vr(V_TID)}
    v_lshrrev_b32 {vr(T0)}, 6, {vr(V_TID)}
    s_mul_i32 s35, s{S_BH}, {HEADB}
    v_readfirstlane_b32 s{S_WAVE}, {vr(T0)}
    s_mul_i32 s45, s{S_QB}, {512*40}
    s_add_u32 s45, s45, s35
    s_and_b32 s46, s{S_BH}, 31
    s_lshl_b32 s46, s46, 1
    s_and_b32 s47, s46, 0x7c
    s_lshr_b32 s{S_ROLE}, s{S_WAVE}, 2
    s_and_b32 s51, s{S_WAVE}, 3
    s_lshl_b32 s51, s51, 7
    v_and_b32 {vr(T2)}, 255, {vr(V_TID)}
    v_mul_u32_u24 {vr(V_GOFF)}, 40, {vr(T2)}
    """)
    q_off(a)
    a(f"""
    s_mov_b32 s{S_GOFF}, 0
    s_waitcnt lgkmcnt(0)
    {"s_memtime s[80:81]" if DBG3 else ""}
    s_load_dword s{S_T}, s[26:27], s47
    s_add_u32 s{SRD_Q}, s20, s45
    s_addc_u32 s{SRD_Q+1}, s21, 0
    s_mov_b32 s{SRD_Q+2}, {512*40}
    s_mov_b32 s{SRD_Q+3}, 0x00020000
    s_add_u32 s{SRD_K}, s22, s35
    s_addc_u32 s{SRD_K+1}, s23, 0
    s_add_u32 s{SRD_V}, s24, s35
    s_addc_u32 s{SRD_V+1}, s25, 0
    s_cmp_eq_u32 s{S_ROLE}, 0
    s_cselect_b32 s{SRD_S}, s{SRD_K}, s{SRD_V}
    s_cselect_b32 s{SRD_S+1}, s{SRD_K+1}, s{SRD_V+1}
    s_mov_b32 s{SRD_S+2}, {HEADB}
    s_mov_b32 s{SRD_S+3}, 0x00020000
    s_cbranch_scc1 L_skipH0
    """)
    q_loads(a, QR, 0)
    a.label("L_skipH0")
    emit_stage_loads(a)
    if H1EARLY:
        a("s_cbranch_scc1 L_skipH1")
        q_loads(a, QR2, 1)
        a.label("L_skipH1")
    a(f"""
    s_add_u32 s{SRD_O}, s28, s45
    s_addc_u32 s{SRD_O+1}, s29, 0
    s_mov_b32 s{SRD_O+2}, {512*40}
    s_mov_b32 s{SRD_O+3}, 0x00020000
    """)
    a(f"""
    s_cmp_eq_u32 s{S_ROLE}, 0
    s_cselect_b32 s3, 16, 48
    v_mul_u32_u24 {vr(V_WL)}, s3, {vr(T2)}
    v_lshlrev_b32 {vr(V_WL2)}, 3, {vr(T2)}
    """)
    a.c("LDS constants: K role writes KB1 plane [1,1,0,0]; V role writes ones chunk [1,0,0,0] at +40")
    a(f"""
    s_mov_b32 s49, 0x3f803f80
    s_mov_b32 s48, 0x00003f80
    s_cselect_b32 s3, s49, s48
    v_mov_b32 {vr(SU+2)}, s3
    v_mov_b32 {vr(SU+3)}, 0
    s_mov_b32 s48, {KB1}
    s_mov_b32 s49, {VOFF+40}
    s_cselect_b32 s3, s48, s49
    v_mov_b32 {vr(SU+4)}, s3
    v_add_u32 {vr(SU+5)}, {vr(SU+4)}, {vr(V_WL)}
    v_add_u32 {vr(SU+4)}, {vr(SU+4)}, {vr(V_WL2)}
    s_cselect_b64 vcc, -1, 0
    v_cndmask_b32 {vr(SU+4)}, {vr(SU+5)}, {vr(SU+4)}, vcc
    v_mov_b32 {vr(V_Z2)}, 0
    v_mov_b32 {vr(V_Z2+1)}, 0
    """)
    for b in range(2):
        a(f"ds_write_b64 {vr(SU+4)}, {vr(SU+2,2)} offset:{b*BUF}")
    a.c("zero accumulators via MFMA")
    a("s_nop 1")
    for o in O:
        zero16(a, o)
    a.c("read lane parts (T0 = n, T1 = h)")
    a(f"""
    v_and_b32 {vr(T0)}, 31, {vr(V_LANE)}
    v_lshrrev_b32 {vr(T1)}, 5, {vr(V_LANE)}
    s_lshl_b32 s3, s{S_ROLE}, 9
    v_lshlrev_b32 {vr(V_KL)}, 4, {vr(T0)}
    v_lshl_add_u32 {vr(V_KL)}, {vr(T1)}, 12, {vr(V_KL)}
    v_add_u32 {vr(V_KL)}, s3, {vr(V_KL)}
    s_lshl_b32 s3, s{S_ROLE}, 8
    s_add_u32 s3, s3, {KB0}
    v_lshlrev_b32 {vr(V_KBL)}, 3, {vr(T0)}
    v_lshl_add_u32 {vr(V_KBL)}, {vr(T1)}, 11, {vr(V_KBL)}
    v_add_u32 {vr(V_KBL)}, s3, {vr(V_KBL)}
    """)
    a(f"""
    s_lshl_b32 s3, s{S_ROLE}, 5
    s_add_u32 s3, s3, s51
    v_add_u32 {vr(SU+6)}, s3, {vr(T0)}
    s_xor_b32 s3, s3, 32
    v_add_u32 {vr(SU+7)}, s3, {vr(T0)}
    v_lshlrev_b32 {vr(SU+8)}, 13, {vr(T1)}
    v_add_u32 {vr(SU+8)}, {QA0}, {vr(SU+8)}
    v_lshlrev_b32 {vr(SU+9)}, 12, {vr(T1)}
    v_add_u32 {vr(SU+9)}, {QB0}, {vr(SU+9)}
    v_lshl_add_u32 {vr(V_QAO)}, {vr(SU+6)}, 4, {vr(SU+8)}
    v_lshl_add_u32 {vr(V_QAE)}, {vr(SU+7)}, 4, {vr(SU+8)}
    v_lshl_add_u32 {vr(V_QBO)}, {vr(SU+6)}, 3, {vr(SU+9)}
    v_lshl_add_u32 {vr(V_QBE)}, {vr(SU+7)}, 3, {vr(SU+9)}
    """)
    a(f"""
    v_mul_u32_u24 {vr(SU+6)}, 40, {vr(SU+6)}
    v_lshl_add_u32 {vr(V_ST16)}, {vr(T1)}, 4, {vr(SU+6)}
    v_lshl_add_u32 {vr(V_ST8)}, {vr(T1)}, 24, {vr(SU+6)}
    s_mul_i32 s3, s{S_WAVE}, {RSLOT}
    s_add_u32 s3, s3, {XR}
    v_lshlrev_b32 {vr(SU+6)}, 4, {vr(V_LANE)}
    v_lshlrev_b32 {vr(SU+7)}, 2, {vr(V_LANE)}
    v_add_u32 {vr(V_SND)}, s3, {vr(SU+6)}
    v_add_u32 {vr(V_SND4)}, s3, {vr(SU+7)}
    s_xor_b32 s3, s{S_WAVE}, 4
    s_mul_i32 s3, s3, {RSLOT}
    s_add_u32 s3, s3, {XR}
    v_add_u32 {vr(V_RCV)}, s3, {vr(SU+6)}
    v_add_u32 {vr(V_RCV4)}, s3, {vr(SU+7)}
    """)
    a(f"""
    v_bfe_u32 {vr(T2)}, {vr(V_LANE)}, 2, 2
    v_lshl_add_u32 {vr(T2)}, {vr(T1)}, 3, {vr(T2)}
    v_mul_u32_u24 {vr(V_VL)}, 48, {vr(T2)}
    v_and_b32 {vr(T2)}, 3, {vr(V_LANE)}
    v_min_u32 {vr(SU+6)}, 1, {vr(T2)}
    v_add_u32 {vr(SU+6)}, 4, {vr(SU+6)}
    v_and_b32 {vr(SU+7)}, 16, {vr(V_LANE)}
    v_cmp_ne_u32 vcc, 0, {vr(SU+7)}
    s_mul_i32 s3, s{S_ROLE}, 1536
    s_add_u32 s3, s3, {VOFF}
    v_cndmask_b32 {vr(T2)}, {vr(T2)}, {vr(SU+6)}, vcc
    v_lshl_add_u32 {vr(V_VL)}, {vr(T2)}, 3, {vr(V_VL)}
    v_add_u32 {vr(V_VL)}, s3, {vr(V_VL)}
    v_mov_b32 {vr(V_IDX)}, 0xdddd
    v_mov_b32 {vr(V_KADDR)}, {vr(V_KL)}
    v_mov_b32 {vr(V_KBADDR)}, {vr(V_KBL)}
    v_mov_b32 {vr(V_VADDR)}, {vr(V_VL)}
    """)
    a.c("t -> scale (T3), bias pair -> plane QB1 row tid")
    BP = S[2] + 8
    a(f"""
    s_waitcnt lgkmcnt(0)
    s_and_b32 s46, s46, 2
    s_lshl_b32 s46, s46, 3
    s_lshr_b32 s{S_T}, s{S_T}, s46
    s_lshl_b32 s{S_T}, s{S_T}, 16
    v_mov_b32 {vr(T3)}, s{S_T}
    v_mul_f32 {vr(T3)}, 0x{LOG2E:08x}, {vr(T3)}
    v_or_b32 {vr(BP)}, 0x80000000, {vr(T3)}
    v_cvt_pk_bf16_f32 {vr(BP)}, {vr(BP)}, 0
    v_mov_b32 {vr(BP+1)}, 0
    s_mov_b32 s{S_QB0}, {QB0}
    v_lshl_add_u32 {vr(V_WA2)}, {vr(V_TID)}, 3, s{S_QB0}
    ds_write_b64 {vr(V_WA2)}, {vr(BP,2)} offset:{QB1-QB0}
    s_cmp_lg_u32 s{S_ROLE}, 0
    s_cbranch_scc1 L_proV
    """)
    a.c("K role: stage K chunk 0")
    a(f"""
    v_mov_b32 {vr(V_WA)}, {vr(V_WL)}
    v_mov_b32 {vr(V_WA2)}, {vr(V_WL2)}
    """)
    t3(a, 1)
    a("s_waitcnt vmcnt(0)")
    t3(a, 2)
    emit_stage_compute_K(a)
    t3(a, 3)
    t3(a, 4)
    a("s_branch L_proE")
    a.label("L_proV")
    a.c("V role: Q first half, then V chunk 0")
    t3(a, 1)
    if H1EARLY:
        a("s_waitcnt vmcnt(6)")
        t3(a, 2)
    else:
        a("s_waitcnt vmcnt(3)")
        t3(a, 2)
        q_loads(a, QR2, 1)
    q_norm_write(a, QR, QU, 0)
    t3(a, 3)
    a(f"""
    v_mov_b32 {vr(V_WA)}, {vr(V_WL)}
    s_waitcnt vmcnt(3)
    """)
    t3(a, 4)
    emit_stage_compute_V(a)
    a.label("L_proE")
    a(f"""
    s_and_b32 s3, s{S_T}, 0x7fffffff
    s_waitcnt lgkmcnt(0)
    {"s_memtime s[90:91]" if DBG3 else ""}
    s_barrier
    {"s_memtime s[92:93]" if DBG3 else ""}
    s_cmp_gt_u32 s3, 0x41800000
    s_cbranch_scc1 L_fallback
    """)
    a.label("L_go")
    if _ps in ("y1", "o1"):
        a(f"s_cmp_eq_u32 s{S_ROLE}, {0 if _ps == 'y1' else 1}")
        a("s_cbranch_scc1 L_noprio")
        a("s_setprio 1")
        a.label("L_noprio")
    k_reads(a, 0, 0)
    q_reads(a, 0)
    q_reads(a, 1)
    k_reads(a, 1, 1)
    v_reads(a, 0, 0)
    a("s_waitcnt lgkmcnt(8)")
    for m in qk(S[0], 0, 0): a(m)
    a("s_waitcnt lgkmcnt(6)")
    for m in qk(S[1], 0, 1): a(m)
    a("s_nop 7")
    ts(a, 1)

    kf = [("c0", 0), ("c0", 1)]
    vf = [("c0", 0), None]
    def peel(order, cur, prev, nxt, kread_at, vread_at, pre, hooks_all, mf_pos=None):
        for p in range(16):
            a.c(f"phase {cur} p={p} tile={order[p]}")
            ps_ = opt("priof" if cur == "c0" else "priol", "-"*16)
            if ps_[p] != "-":
                a(f"s_setprio {ps_[p]}")
            a("s_waitcnt lgkmcnt(0)")
            for x in pre.get(p, []): a(x)
            hooks = {k: list(v) for k, v in hooks_all.get(p, {}).items()}
            if p in vread_at:
                c, m = vread_at[p]
                v_reads(a, m % 2, m)
                vf[m % 2] = (c, m)
            tight = False
            if p in kread_at:
                ent = kread_at[p]
                c, m = ent[0], ent[1]
                if len(ent) > 2:
                    hooks.setdefault(ent[2], []).extend(cap(k_reads, m % 2, m))
                else:
                    k_reads(a, m % 2, m)
                kf[m % 2] = (c, m)
                knew = (p, m % 2)
            else:
                knew = None
            items = []
            if p == 0:
                pt = None if prev is None else (prev, 3, 3)
            else:
                pt = (cur,) + order[p-1]
            pos = (mf_pos or {}).get(p, [0, 4, 8, 12])
            if pt is not None:
                c, m, r = pt
                assert vf[m % 2] == (c, m), (cur, p, vf, pt)
                assert not (p in vread_at and vread_at[p][1] % 2 == m % 2), (cur, p)
                P = pv(O[r], m % 2, S[(p-1) % 4])
                items += [(pos[0], P[0]), (pos[1], P[1])]
            if p + 2 < 16:
                qt = (cur,) + order[p+2]
            elif nxt is not None:
                qt = (nxt, 0, p + 2 - 16)
            else:
                qt = None
            if qt is not None:
                c, m, r = qt
                assert kf[m % 2] == (c, m), (cur, p, kf, qt)
                if knew is not None and knew[1] == m % 2:
                    hooks.setdefault(pos[2], []).insert(0, "s_waitcnt lgkmcnt(0)")
                Qk = qk(S[(p+2) % 4], m % 2, r)
                items += [(pos[2], Qk[0]), (pos[3], Qk[1])]
            items2 = []
            for e in range(17):
                w = [x for x in hooks.get(e, []) if x.startswith("s_waitcnt")]
                if w and any(pe == e for pe, _ in items):
                    for x in w:
                        items2.append((e, x)); hooks[e].remove(x)
            phase2(a, S[p % 4], items2 + items, hooks)

    pre = {}; hk = {}
    uid[0] += 1
    hk[0] = {int(opt("c1e", "4")): [f"s_mov_b32 s{S_GOFF}, {CH*40}"] + cap(emit_stage_loads)}
    H1P = int(opt("h1p", "5"))
    s = Sub()
    s(f"s_cmp_eq_u32 s{S_ROLE}, 0")
    s("s_cbranch_scc1 L_skipH1n")
    s("s_waitcnt vmcnt(3)")
    if DBG3: s("s_memtime s[94:95]")
    q_norm_write(s, QR2, SU, 1)
    pre[H1P] = (["s_memtime s[64:65]", "s_memtime s[94:95]"] if DBG3 else []) + s.l + ["L_skipH1n:"]
    pre[6] = ["s_barrier"] + (["s_memtime s[96:97]"] if DBG3 else []) + cap(q_reads, 2) + cap(q_reads, 3)
    hk[6] = {8: ["s_waitcnt lgkmcnt(6)"]}
    C1P = int(opt("c1p", "9"))
    s = Sub()
    class LA(Sub):
        def label(self, x): self.l.append(x + ":")
    s = LA()
    emit_stage_write(s, BUF)
    s(f"s_mov_b32 s{S_GOFF}, {2*CH*40}")
    emit_stage_loads(s)
    pre[C1P] = s.l
    hk[13] = {8: ["s_waitcnt lgkmcnt(0)", "s_barrier",
                  f"v_add_u32 {vr(V_KADDR)}, {BUF}, {vr(V_KL)}", f"v_add_u32 {vr(V_KBADDR)}, {BUF}, {vr(V_KBL)}"]}
    pre[15] = [f"v_add_u32 {vr(V_VADDR)}, {BUF}, {vr(V_VL)}"]
    kr = {1: ("c0", 2), 3: ("c0", 3), 5: ("c0", 0), 7: ("c0", 1), 9: ("c0", 2), 11: ("c0", 3), 13: ("c1", 0, 8)}
    vrd = {2: ("c0", 1), 4: ("c0", 2), 6: ("c0", 3), 8: ("c0", 0), 10: ("c0", 1), 12: ("c0", 2), 13: ("c0", 3), 15: ("c1", 0)}
    _call = Asm.__call__
    def call2(self, s_):
        for x in s_.strip("\n").split("\n"):
            x = x.strip()
            if not x: continue
            if x.endswith(":"): self.l.append(x)
            else: self.l.append("  " + x)
    Asm.__call__ = call2
    peel(ORDER_F, "c0", None, "c1", kr, vrd, pre, hk)
    a(f"""
    s_mov_b32 s{S_RN}, 0
    s_mov_b32 s{S_CNT}, {NCH-2}
    {"s_memtime s[98:99]" if DBG3 else ""}
    """)
    if opt("align"):
        a.l.append(f".p2align {opt('align')}")
    a.label("L_loop")
    for m in range(4):
        for i in range(4):
            if i == 0:
                a("s_waitcnt lgkmcnt(0)")
                if m == 3:
                    a("s_barrier")
                    a(f"v_add_u32 {vr(V_KADDR)}, s{S_RN}, {vr(V_KL)}")
                    a(f"v_add_u32 {vr(V_KBADDR)}, s{S_RN}, {vr(V_KBL)}")
                k_reads(a, (m+1) % 2, (m+1) % 4)
            if PRIO.get((m, i)) is not None:
                a(f"s_setprio {PRIO[(m, i)]}")
            if i == 2:
                a("s_waitcnt lgkmcnt(0)")
                if m == 3:
                    a(f"v_add_u32 {vr(V_VADDR)}, s{S_RN}, {vr(V_VL)}")
                v_reads(a, (m+1) % 2, (m+1) % 4)
            if m == STG_M and i == STG_I:
                u = "L_skipst"
                emit_stage_write(a, f"s{S_RN}")
                a(f"s_add_u32 s{S_GOFF}, s{S_GOFF}, {CH*40}")
                a(f"s_cmp_eq_u32 s{S_CNT}, 1")
                a(f"s_cbranch_scc1 {u}")
                emit_stage_loads(a)
                a.label(u)
            P = pv(O[(i-1) % 4], (m-1) % 2 if i == 0 else m % 2, S[(i-1) % 4])
            Qk = qk(S[(i+2) % 4], (m+1) % 2 if i >= 2 else m % 2, (i+2) % 4)
            phase(a, S[i], P + Qk)
    a(f"""
    s_xor_b32 s{S_RN}, s{S_RN}, {BUF}
    s_sub_u32 s{S_CNT}, s{S_CNT}, 1
    s_cmp_lg_u32 s{S_CNT}, 0
    s_cbranch_scc1 L_loop
    """)
    kf[:] = [("cl", 0), ("cp", 3)]
    vf[:] = [("cl", 0), ("cp", 3)]
    pre = {}; hk = {}
    PX = SU
    X1S = int(opt("x1s", "8"))
    hk[X1S] = {}
    spread(hk[X1S], send(0), 4, 10)
    pre[X1S+1] = ["s_barrier"] + recv(0, PX)
    f1 = finalize(1, PX, T2)
    hk[X1S+2] = {}; hk[X1S+3] = {}
    half = len(f1) // 2
    spread(hk[X1S+2], f1[:half], 1, 15)
    spread(hk[X1S+3], f1[half:], 1, 15)
    hk[14] = {}
    spread(hk[14], send(2), 14, 16)
    pre[15] = ["s_barrier"] + recv(1, PX)
    Pl = pv(O[3], 1, S[3])
    hk[15] = {9: ["s_nop 1", Pl[0]]} if not opt("nosplit") else {}
    if DBG2 and not DBG3:
        pre[12] = ["s_memtime s[64:65]", "s_memrealtime s[78:79]"]
    kr = {0: ("cl", 1), 1: ("cl", 2), 3: ("cl", 3), 5: ("cl", 0), 7: ("cl", 1), 9: ("cl", 2), 10: ("cl", 3)}
    vrd = {2: ("cl", 1), 4: ("cl", 2), 6: ("cl", 3), 8: ("cl", 0), 10: ("cl", 1), 12: ("cl", 2), 13: ("cl", 3)}
    mfp = {14: [0, 2, 8, 12], 15: [0, 2, 8, 12]}
    peel(ORDER_L, "cl", "cp", None, kr, vrd, pre, hk, mfp)
    a("s_nop 1")
    if opt("nosplit"): a(Pl[0])
    a(Pl[1])
    a("s_waitcnt lgkmcnt(0)")
    a("s_nop 7\ns_nop 3")
    for x in finalize(3, PX, T2): a(x)
    if DBG3:
        a(f"""
        s_waitcnt vmcnt(0)
        s_memtime s[66:67]
        s_waitcnt lgkmcnt(0)
        s_and_b32 s3, s{S_WAVE}, 3
        s_cmp_lg_u32 s3, {opt("dbgw", "0")}
        s_cbranch_scc1 L_end
        s_lshl_b32 s3, s2, 7
        s_lshl_b32 s4, s{S_ROLE}, 6
        s_add_u32 s3, s3, s4
        v_mov_b32 v0, s3
        v_mov_b32 v2, s60
        v_mov_b32 v3, s80
        v_mov_b32 v4, s82
        v_mov_b32 v5, s84
        v_mov_b32 v6, s86
        v_mov_b32 v7, s88
        v_mov_b32 v8, s90
        v_mov_b32 v9, s92
        v_mov_b32 v10, s62
        v_mov_b32 v11, s64
        v_mov_b32 v12, s94
        v_mov_b32 v13, s96
        v_mov_b32 v14, s98
        v_mov_b32 v15, s66
        v_mov_b32 v16, 0
        v_mov_b32 v17, 0
        s_mov_b64 exec, 1
        global_store_dwordx4 v0, v[2:5], s[58:59]
        global_store_dwordx4 v0, v[6:9], s[58:59] offset:16
        global_store_dwordx4 v0, v[10:13], s[58:59] offset:32
        global_store_dwordx4 v0, v[14:17], s[58:59] offset:48
        """)
    elif DBGH:
        a(f"""
        s_waitcnt vmcnt(0)
        s_memtime s[66:67]
        s_memrealtime s[72:73]
        s_waitcnt lgkmcnt(0)
        s_cmp_lg_u32 s{S_WAVE}, 0
        s_cbranch_scc1 L_end
        s_sub_u32 s3, s62, s60
        s_sub_u32 s4, s64, s62
        s_sub_u32 s5, s66, s64
        s_not_b32 s6, s70
        s_not_b32 s7, s76
        s_not_b32 s8, s78
        s_not_b32 s9, s72
        s_not_b32 s10, s3
        s_not_b32 s11, s4
        s_not_b32 s12, s5
        v_mov_b32 v0, 0
        v_mov_b32 v2, s6
        v_mov_b32 v3, s70
        v_mov_b32 v4, s7
        v_mov_b32 v5, s76
        v_mov_b32 v6, s8
        v_mov_b32 v7, s78
        v_mov_b32 v8, s9
        v_mov_b32 v9, s72
        v_mov_b32 v10, s3
        v_mov_b32 v11, s4
        v_mov_b32 v12, s5
        v_mov_b32 v13, s10
        v_mov_b32 v14, s11
        v_mov_b32 v15, s12
        s_mov_b64 exec, 1
        """)
        for i in range(14):
            a(f"global_atomic_umax v0, v{2+i}, s[58:59] offset:{4*i}")
    elif DBG2:
        a(f"""
        s_waitcnt vmcnt(0)
        s_memtime s[66:67]
        s_memrealtime s[72:73]
        s_waitcnt lgkmcnt(0)
        s_cmp_lg_u32 s{S_WAVE}, 0
        s_cbranch_scc1 L_end
        s_lshl_b32 s3, s2, 5
        v_mov_b32 v0, s3
        v_mov_b32 v2, s60
        v_mov_b32 v3, s62
        v_mov_b32 v4, s64
        v_mov_b32 v5, s66
        v_mov_b32 v6, s70
        v_mov_b32 v7, s72
        v_mov_b32 v8, s76
        v_mov_b32 v9, s78
        s_mov_b64 exec, 1
        global_store_dwordx4 v0, v[2:5], s[58:59]
        global_store_dwordx4 v0, v[6:9], s[58:59] offset:16
        """)
    a.label("L_end")
    a("s_endpgm")
    a.label("L_fallback")
    MX = [V_QOFF, V_FB1, V_KADDR, V_KBADDR]
    FK, FKB = V_VADDR, T3
    a(f"""
    s_cmp_eq_u32 s{S_ROLE}, 0
    s_cbranch_scc1 L_fb_skipH1
    s_waitcnt vmcnt(0)
    """)
    q_norm_write(a, QR2, SU, 1)
    a.label("L_fb_skipH1")
    a(f"""
    s_waitcnt vmcnt(0) lgkmcnt(0)
    s_barrier
    s_mov_b32 s{S_GOFF}, 0
    s_mov_b32 s{S_CNT}, {NCH}
    """)
    for i in range(4):
        q_reads(a, i)
    for i in range(4):
        a(f"v_mov_b32 {vr(MX[i])}, 0xff800000")
    a("s_waitcnt lgkmcnt(0)")
    a.label("L_fb_chunk")
    emit_stage_loads(a)
    emit_stage_write(a, 0)
    a(f"""
    s_waitcnt lgkmcnt(0)
    s_barrier
    v_and_b32 {vr(T0)}, 31, {vr(V_LANE)}
    v_lshrrev_b32 {vr(T1)}, 5, {vr(V_LANE)}
    v_lshlrev_b32 {vr(FK)}, 4, {vr(T0)}
    v_lshl_add_u32 {vr(FK)}, {vr(T1)}, 12, {vr(FK)}
    v_lshlrev_b32 {vr(FKB)}, 3, {vr(T0)}
    v_lshl_add_u32 {vr(FKB)}, {vr(T1)}, 11, {vr(FKB)}
    v_add_u32 {vr(FKB)}, {KB0}, {vr(FKB)}
    s_mov_b32 s3, 8
    """)
    a.label("L_fb_tile")
    k_reads(a, 0, 0, FK, FKB)
    a("s_waitcnt lgkmcnt(0)")
    for i in range(4):
        for x in qk(S[i], 0, i): a(x)
    a("s_nop 7\ns_nop 7")
    for i in range(4):
        for r in range(0, 16, 2):
            a(f"v_max3_f32 {vr(MX[i])}, {vr(S[i]+r)}, {vr(S[i]+r+1)}, {vr(MX[i])}")
    a(f"""
    v_add_u32 {vr(FK)}, 512, {vr(FK)}
    v_add_u32 {vr(FKB)}, 256, {vr(FKB)}
    s_sub_u32 s3, s3, 1
    s_cmp_lg_u32 s3, 0
    s_cbranch_scc1 L_fb_tile
    s_barrier
    s_add_u32 s{S_GOFF}, s{S_GOFF}, {CH*40}
    s_sub_u32 s{S_CNT}, s{S_CNT}, 1
    s_cmp_lg_u32 s{S_CNT}, 0
    s_cbranch_scc1 L_fb_chunk
    """)
    a(f"""
    v_lshlrev_b32 {vr(T3)}, 3, {vr(V_TID)}
    v_add_u32 {vr(T3)}, {QB1}, {vr(T3)}
    ds_read_b32 {vr(SU)}, {vr(T3)}
    s_waitcnt lgkmcnt(0)
    v_lshlrev_b32 {vr(SU)}, 16, {vr(SU)}
    s_barrier
    """)
    for i in range(4):
        Ox = MX[i]
        at = V_QBE if (i & 1) == 0 else V_QBO
        a(f"""
        v_mov_b32 {vr(T1)}, {vr(Ox)}
        s_nop 1
        v_permlane32_swap_b32 {vr(Ox)}, {vr(T1)}
        s_nop 1
        v_max_f32 {vr(T0)}, {vr(Ox)}, {vr(T1)}
        v_sub_f32 {vr(T0)}, {vr(SU)}, {vr(T0)}
        v_cvt_pk_bf16_f32 {vr(T1)}, {vr(T0)}, 0
        v_lshlrev_b32 {vr(T2)}, 16, {vr(T1)}
        v_sub_f32 {vr(T2)}, {vr(T0)}, {vr(T2)}
        v_cvt_pk_bf16_f32 {vr(SU+2)}, {vr(T0)}, {vr(T2)}
        v_mov_b32 {vr(SU+3)}, 0
        v_or_b32 {vr(SU+4)}, 0x1000, {vr(at)}
        ds_write_b64 {vr(SU+4)}, {vr(SU+2,2)} offset:{(i >> 1) * 512}
        """)
    a(f"s_mov_b32 s{S_GOFF}, 0")
    emit_stage_loads(a)
    emit_stage_write(a, 0)
    q_off(a)
    a(f"""
    s_cmp_eq_u32 s{S_ROLE}, 0
    s_cbranch_scc1 L_fb_skipH1l
    """)
    q_loads(a, QR2, 1)
    a.label("L_fb_skipH1l")
    a(f"""
    v_mov_b32 {vr(T3)}, s{S_T}
    v_mul_f32 {vr(T3)}, 0x{LOG2E:08x}, {vr(T3)}
    v_mov_b32 {vr(V_KADDR)}, {vr(V_KL)}
    v_mov_b32 {vr(V_KBADDR)}, {vr(V_KBL)}
    v_mov_b32 {vr(V_VADDR)}, {vr(V_VL)}
    s_waitcnt lgkmcnt(0)
    s_barrier
    s_branch L_go
    """)
    ftr = f"""
.section .rodata,"a"
.p2align 6
.amdhsa_kernel {name}
  .amdhsa_next_free_vgpr {NV}
  .amdhsa_next_free_sgpr 102
  .amdhsa_accum_offset {ACC_OFF}
  .amdhsa_group_segment_fixed_size 0
  .amdhsa_kernarg_size 56
  .amdhsa_user_sgpr_count 2
  .amdhsa_user_sgpr_kernarg_segment_ptr 1
  .amdhsa_system_sgpr_workgroup_id_x 1
.end_amdhsa_kernel
"""
    return hdr + a.text() + ftr

if __name__ == "__main__":
    av = [x for x in sys.argv[1:] if not x.startswith("--")]
    out = av[0] if av else "v4.s"
    open(out, "w").write(gen())
```
